```python
import torch

def _softmax(x, axis=-1):
    return torch.softmax(x, dim=axis)
def _gelu(x):
    return torch.nn.functional.gelu(x, approximate="tanh")
def _silu(x):
    return torch.nn.functional.silu(x)
def _sigmoid(x):
    return torch.sigmoid(x)
def _layernorm(x, axis=-1, eps=1e-5):
    m = x.mean(dim=axis, keepdim=True)
    v = x.var(dim=axis, keepdim=True, unbiased=False)
    return (x - m) / torch.sqrt(v + eps)
def _scatter_add(tgt, idx, src, axis=0):
    return tgt.clone().index_add_(axis, idx, src)
def _segment_sum(src, seg, n):
    out = torch.zeros((n,) + src.shape[1:], dtype=src.dtype)
    return out.index_add_(0, seg, src)
def _pad(x, pw):
    flat = tuple(v for pair in reversed(pw) for v in pair)
    return torch.nn.functional.pad(x, flat)

kernel_name = 'recurrent_scan__gqa_block_cached__swiglu_ffn__decode'

def setup_inputs():

    _w = (lambda a: (lambda t: t.to(torch.bfloat16) if t.is_floating_point() else t)(torch.as_tensor(a)))
    def _A_setup():
        B, Sq, D = 1, 1, 576
        Hq, Hkv, Sk, Dh = 32, 16, 65536, 128
        assert Hq % Hkv == 0, (Hq, Hkv)
        return {
            "x": _w((lambda *s: torch.randn(*s, dtype=torch.bfloat16) * 0.05)(B, Sq, D)),
            "k_cache": _w((lambda *s: torch.randn(*s, dtype=torch.bfloat16) * 1.6)(B, Hkv, Sk, Dh)),
            "v_cache": _w((lambda *s: torch.randn(*s, dtype=torch.bfloat16) * 0.2)(B, Hkv, Sk, Dh)),
            "wq": _w((lambda *s: torch.randn(*s, dtype=torch.bfloat16) * 1.6)(D, Hq * Dh) * (D ** -0.5)),
            "wo": _w((lambda *s: torch.randn(*s, dtype=torch.bfloat16) * 0.2)(Hq * Dh, D) * ((Hq * Dh) ** -0.5)),
        }
    _A_in = _A_setup()

    def _B_setup():
        B, S, D, F = 1, 1, 576, 4608
        return {
            "x": _w((lambda *s: torch.randn(*s, dtype=torch.bfloat16) * 0.05)(B, S, D)),
            "w_gate": _w((lambda *s: torch.randn(*s, dtype=torch.bfloat16) * 0.1)(D, F)),
            "w_up": _w((lambda *s: torch.randn(*s, dtype=torch.bfloat16) * 0.1)(D, F)),
            "w_down": _w((lambda *s: torch.randn(*s, dtype=torch.bfloat16) * 0.1)(F, D)),
        }
    _B_in = _B_setup()

    return {
        "A_x": _A_in["x"],
        "A_k_cache": _A_in["k_cache"],
        "A_v_cache": _A_in["v_cache"],
        "A_wq": _A_in["wq"],
        "A_wo": _A_in["wo"],
        "B_x": _B_in["x"],
        "B_w_gate": _B_in["w_gate"],
        "B_w_up": _B_in["w_up"],
        "B_w_down": _B_in["w_down"],
    }

def reference(A_x, A_k_cache, A_v_cache, A_wq, A_wo, B_x, B_w_gate, B_w_up, B_w_down):
    def _A_ref(x, k_cache, v_cache, wq, wo):
        B, Sq, D = x.shape
        Hq, Dh = 32, 128
        Hkv = k_cache.shape[1]
        rep = Hq // Hkv
        q = (lambda x, *d: x.permute(*d))((x @ wq).reshape(B, Sq, Hq, Dh), 0, 2, 1, 3)
        k = (lambda x, n, axis: torch.repeat_interleave(x, n, dim=axis))(k_cache, rep, axis=1)
        v = (lambda x, n, axis: torch.repeat_interleave(x, n, dim=axis))(v_cache, rep, axis=1)
        scores = torch.einsum("bhqd,bhkd->bhqk", q, k) * (Dh ** -0.5)
        p = _softmax(scores, axis=-1)
        o = torch.einsum("bhqk,bhkd->bhqd", p, v)
        return (lambda x, *d: x.permute(*d))(o, 0, 2, 1, 3).reshape(B, Sq, Hq * Dh) @ wo

    def _B_ref(x, w_gate, w_up, w_down):
        g = _silu(x @ w_gate)
        u = x @ w_up
        return (g * u) @ w_down

    x = A_x
    xn = _layernorm(x, axis=-1)
    s = _A_ref(xn, A_k_cache, A_v_cache, A_wq, A_wo)
    g = _silu(_B_ref(xn, B_w_gate, B_w_up, B_w_down))
    return x + s * g
```

```python
import re

TRANS = ('v_exp_f32', 'v_log_f32', 'v_rcp_f32', 'v_rsq_f32', 'v_sqrt_f32', 'v_sin_f32', 'v_cos_f32')


def regs_of(tok):
    tok = tok.strip()
    neg = tok.startswith('-')
    if neg:
        tok = tok[1:]
    m = re.fullmatch(r'abs\((.*)\)', tok)
    if m:
        tok = m.group(1)
    m = re.fullmatch(r'([vsa])(\d+)', tok)
    if m:
        return [(m.group(1), int(m.group(2)))]
    m = re.fullmatch(r'([vsa])\[(\d+):(\d+)\]', tok)
    if m:
        return [(m.group(1), i) for i in range(int(m.group(2)), int(m.group(3)) + 1)]
    if tok == 'vcc':
        return [('s', 106), ('s', 107)]
    if tok == 'vcc_lo':
        return [('s', 106)]
    if tok == 'vcc_hi':
        return [('s', 107)]
    if tok == 'exec':
        return [('s', 126), ('s', 127)]
    return []


class Inst:
    __slots__ = ('op', 'cls', 'w', 'r', 'dpp', 'srcc', 'srcab', 'wide_store', 'text', 'states')


class Asm:
    def __init__(self):
        self.lines = []
        self.hist = []
        self.vm_issued = 0
        self.nlabel = 0

    def raw(self, s):
        self.lines.append(s)

    def comment(self, s):
        self.lines.append('    ; ' + s)

    def label(self, name):
        self.lines.append(name + ':')

    def newlabel(self, base='L'):
        self.nlabel += 1
        return '%s_%d' % (base, self.nlabel)

    def fence(self):
        need = 0
        d = 0
        for p in reversed(self.hist[-24:]):
            if p.cls == 'mfma':
                need = max(need, 8 - d)
            elif p.cls in ('valu', 'trans', 'dot', 'permlane', 'readlane'):
                need = max(need, 5 - d)
            elif p.wide_store:
                need = max(need, 2 - d)
            d += p.states
        if need > 0:
            self.nop(need)

    def nop(self, n):
        while n > 0:
            k = min(n, 16)
            self._push('s_nop', 'salu', [], [], 's_nop %d' % (k - 1), states=k)
            n -= k

    def _push(self, op, cls, w, r, text, states=1, dpp=False, srcc=None, srcab=None, wide_store=False):
        i = Inst()
        i.op, i.cls, i.w, i.r, i.text, i.states = op, cls, set(w), set(r), text, states
        i.dpp, i.srcc, i.srcab, i.wide_store = dpp, srcc, srcab, wide_store
        self.hist.append(i)
        if len(self.hist) > 64:
            self.hist = self.hist[-40:]
        self.lines.append('    ' + text)

    def __call__(self, text):
        text = text.strip()
        m = re.match(r'(\S+)\s*(.*)', text)
        op, rest = m.group(1), m.group(2)
        parts = [p.strip() for p in rest.split(',')] if rest else []
        if 'quad_perm' in rest:
            idx = rest.index('quad_perm')
            parts = [p.strip() for p in rest[:idx].split(',')]
            mods = rest[idx:]
            last = parts[-1].split()
            parts[-1] = last[0]
        else:
            mods = ''
            if parts:
                last = parts[-1].split()
                parts[-1] = last[0] if last else ''
                mods = ' '.join(last[1:])
        dpp = ('_dpp' in op) or ('row_' in mods) or ('quad_perm' in mods)
        w, r = [], []
        srcc = srcab = None
        wide = False
        base = op.replace('_e32', '').replace('_e64', '').replace('_dpp', '')
        if op.startswith('v_mfma'):
            cls = 'mfma'
            w = regs_of(parts[0])
            srcab = set(regs_of(parts[1]) + regs_of(parts[2]))
            srcc = set(regs_of(parts[3]))
            r = list(srcab | srcc)
        elif op.startswith('v_permlane'):
            cls = 'permlane'
            w = regs_of(parts[0]) + regs_of(parts[1])
            r = list(w)
        elif base in ('v_readlane_b32', 'v_readfirstlane_b32'):
            cls = 'readlane'
            w = regs_of(parts[0])
            for p in parts[1:]:
                r += regs_of(p)
        elif op.startswith('v_dot2'):
            cls = 'dot'
            w = regs_of(parts[0])
            srcab = set(regs_of(parts[1]) + regs_of(parts[2]))
            if len(parts) > 3:
                srcc = set(regs_of(parts[3]))
            else:
                srcc = set(w)
            r = list(srcab | srcc)
        elif op.startswith('v_'):
            cls = 'trans' if base in TRANS else 'valu'
            nd = 1
            if '_co_' in op:
                nd = 2
            for p in parts[:nd]:
                w += regs_of(p)
            for p in parts[nd:]:
                r += regs_of(p)
            if base in ('v_fmac_f32', 'v_fmamk_f32') or dpp:
                r += regs_of(parts[0])
            if base == 'v_cndmask_b32' and len(parts) == 3:
                r += regs_of('vcc')
            if base.startswith('v_writelane'):
                r += regs_of(parts[0])
        elif op.startswith('buffer_load') or op.startswith('global_load'):
            cls = 'vmem'
            w = regs_of(parts[0])
            for p in parts[1:]:
                r += regs_of(p)
            self.vm_issued += 1
        elif op.startswith('buffer_store') or op.startswith('buffer_atomic') or op.startswith('global_store'):
            cls = 'vmem'
            for p in parts:
                r += regs_of(p)
            wide = ('x4' in op or 'x3' in op)
            if op.startswith('buffer_atomic') and 'sc0' in mods:
                w = regs_of(parts[0])
            self.vm_issued += 1
        elif op.startswith('ds_read') or op.startswith('ds_bpermute') or op.startswith('ds_swizzle'):
            cls = 'ds'
            w = regs_of(parts[0])
            for p in parts[1:]:
                r += regs_of(p)
        elif op.startswith('ds_'):
            cls = 'ds'
            for p in parts:
                r += regs_of(p)
        elif op.startswith('s_'):
            cls = 'salu'
            if op in ('s_nop',):
                n = int(parts[0])
                self._push(op, cls, [], [], text, states=n + 1)
                return
            if not (op.startswith('s_cmp') or op.startswith('s_cbranch') or op in ('s_branch', 's_waitcnt', 's_barrier', 's_endpgm', 's_sleep', 's_setprio')):
                if parts:
                    w = regs_of(parts[0])
                for p in parts[1:]:
                    r += regs_of(p)
            else:
                for p in parts:
                    r += regs_of(p)
        else:
            raise ValueError('unknown op ' + text)
        W, R = set(w), set(r)
        need = 0
        d = 0
        isvalu = cls in ('valu', 'trans', 'dot', 'permlane', 'readlane', 'mfma')
        for p in reversed(self.hist[-24:]):
            req = 0
            pw_v = {x for x in p.w if x[0] in 'va'}
            pw_s = {x for x in p.w if x[0] == 's'}
            if p.cls in ('valu', 'trans', 'dot', 'permlane', 'readlane'):
                if pw_v & R:
                    if dpp:
                        req = max(req, 2)
                    if cls == 'readlane':
                        req = max(req, 1)
                    if cls == 'permlane':
                        req = max(req, 2)
                    if cls == 'mfma':
                        req = max(req, 2)
                    if p.cls == 'trans':
                        req = max(req, 1)
                if p.cls == 'dot' and (pw_v & (R | W)):
                    if cls == 'dot' and p.op == op and not (pw_v & srcab):
                        pass
                    else:
                        req = max(req, 3)
                if pw_s & R:
                    if cls == 'vmem':
                        req = max(req, 5)
                    elif cls == 'readlane':
                        req = max(req, 4)
                    elif isvalu:
                        req = max(req, 2)
                    elif cls == 'salu':
                        req = max(req, 1)
            elif p.cls == 'mfma':
                if cls == 'mfma':
                    if pw_v & srcab:
                        req = max(req, 8)
                    if pw_v & srcc and pw_v != srcc:
                        req = max(req, 6)
                elif cls != 'salu':
                    if pw_v & (R | W):
                        req = max(req, 8)
                    if isvalu and (p.srcc & W):
                        req = max(req, 3)
            if p.wide_store and (p.r & W):
                req = max(req, 2)
            need = max(need, req - d)
            d += p.states
        if need > 0:
            self.nop(need)
        self._push(op, cls, w, r, text, dpp=dpp, srcc=srcc, srcab=srcab, wide_store=wide)

    def vm_mark(self):
        return self.vm_issued

    def vm_wait(self, mark):
        n = self.vm_issued - mark
        assert n >= 0
        if n > 63:
            n = 63
        self('s_waitcnt vmcnt(%d)' % n)

    def text(self):
        return '\n'.join(self.lines) + '\n'
```

```python
import sys, argparse, struct
sys.path.insert(0, 'dev')
from asmlib import Asm

NAME = 'recurrent_scan__gqa_block_cached__swiglu_ffn__decode'

def f2u(x):
    return struct.unpack('<I', struct.pack('<f', x))[0]

LOG2E = f2u(1.4426950408889634)
SCALE = f2u(128 ** -0.5)
DPPM = 'row_mask:0xf bank_mask:0xf'

Q_BASE = 0
C_BASE = 0x8000
O_BASE = 0x10000
Y_BASE = 0x100000
Z_BASE = 0x200000
TS_BASE = 0x300000
WS_SIZE = 0x400000
CLR_OFF = 192
HBUF, WBUF, ZBUF, CBUF, MLBUF, RBUF, LDS_SIZE = 0, 512, 1536, 10752, 14848, 14976, 16384
NCH = 2048


def gen(NS=26, diag=False, wnt=True, spin=1 << 16, ring_early=True):
    a = Asm()
    R = 4
    NT = ' nt'
    WNT = ' nt' if wnt else ''
    vT, vL, vOFF, vAT = 0, 1, 2, 3
    qA, qB, MK, ACC = 4, 8, 12, 16
    vM, vLs = 20, 21
    X, Y, P2 = 22, 26, 30
    vAL, vT1 = 34, 35
    B0, B1 = 36, 40
    vT2, vT3, vT4, vCLR = 44, 45, 46, 47
    RING = 48
    WREG = RING + R * 16
    WD = WREG + 72
    XR = WD
    XR = 228
    XG = 238
    XL = RING
    vA1, vA2, vXO, vZ, vS1, vS2 = 248, 249, 250, 251, 252, 253
    NVGPR = 254
    AC = 22
    XH = XG
    XL = XR
    pX, pK, pV, pWQ, pWO, pBX, pWG, pWU, pWD, pOUT, pDBG, pWS = [8 + 2 * i for i in range(12)]
    sK, sV, sX, sA, sB, sWD, sWO, sWS, sDBG, sOUT = [32 + 4 * i for i in range(10)]
    sW, sROLE, sSL, sCOLA, sDB, sSTR, sT0, sT1, sT2, sOFFS, sSTEP = range(72, 83)
    sNXT, sIT, sLOG2E, sSCALE, sSPIN, sKVH, sJ, sINB, sWID, sCNT, sNX2 = range(83, 94)
    sP = 8
    sTS = 96
    sM0 = 98

    def srd(n):
        return 's[%d:%d]' % (n, n + 3)

    def vr(n, k=4):
        return 'v[%d:%d]' % (n, n + k - 1)

    tsn = [0]

    def stamp():
        if not diag:
            return
        k = tsn[0]
        tsn[0] += 1
        l = a.newlabel('TS')
        a('s_cmp_lg_u32 s%d, 0' % sW)
        a('s_cbranch_scc1 %s' % l)
        a('s_memrealtime s[%d:%d]' % (sTS, sTS + 1))
        a('s_waitcnt lgkmcnt(0)')
        a('v_mov_b32 v%d, s%d' % (vS1, sTS))
        a('v_mov_b32 v%d, s%d' % (vS2, sTS + 1))
        a('s_lshl_b32 s%d, s2, 7' % sTS)
        a('s_add_u32 s%d, s%d, %d' % (sTS, sTS, TS_BASE + k * 8))
        a('v_mov_b32 v%d, 0' % vZ)
        a('s_mov_b64 exec, 1')
        a('buffer_store_dwordx2 v[%d:%d], v%d, %s, s%d offen' % (vS1, vS2, vZ, srd(sWS), sTS))
        a.vm_issued -= 1
        a('s_mov_b64 exec, -1')
        a.fence()
        a.label(l)

    def rnd_hi(dst, src):
        a('v_cvt_pk_bf16_f32 v%d, v%d, v%d' % (dst, src, src))
        a('v_and_b32 v%d, 0xffff0000, v%d' % (dst, dst))

    def allreduce(reg, op, tmp, steps=(8, 4, 2, 1)):
        for s in steps:
            a('%s_dpp v%d, v%d, v%d row_ror:%d %s' % (op, reg, reg, reg, s, DPPM))
        for sw in ('v_permlane16_swap_b32', 'v_permlane32_swap_b32'):
            a('v_mov_b32 v%d, v%d' % (tmp, reg))
            a('%s v%d, v%d' % (sw, reg, tmp))
            a('%s v%d, v%d, v%d' % (op, reg, reg, tmp))

    def mk_srd(s, p, nrec, off_sgpr=None):
        if off_sgpr is None:
            a('s_mov_b32 s%d, s%d' % (s, p))
            a('s_mov_b32 s%d, s%d' % (s + 1, p + 1))
        else:
            a('s_add_u32 s%d, s%d, s%d' % (s, p, off_sgpr))
            a('s_addc_u32 s%d, s%d, 0' % (s + 1, p + 1))
        if nrec is not None:
            a('s_mov_b32 s%d, 0x%x' % (s + 2, nrec))
        a('s_mov_b32 s%d, 0x00020000' % (s + 3))

    def ring_load(slot, isV, soff):
        for u in range(4):
            a('buffer_load_dwordx4 %s, v%d, %s, s%d offen offset:%d%s' % (vr(RING + slot * 16 + u * 4), vOFF, srd(sV if isV else sK), soff, u * 1024, NT))

    a.raw('; @launch grid=(256,1,1) block=(256,1,1) lds=%d' % LDS_SIZE)
    a.raw('.amdgcn_target "amdgcn-amd-amdhsa--gfx950"')
    a.raw('.text')
    a.raw('.globl %s_kernel' % NAME)
    a.raw('.p2align 8')
    a.raw('.type %s_kernel,@function' % NAME)
    a.label('%s_kernel' % NAME)
    a('s_cmp_ge_u32 s2, 256')
    a('s_cbranch_scc1 L_END')
    a('s_load_dwordx16 s[8:23], s[0:1], 0')
    a('s_load_dwordx8 s[24:31], s[0:1], 64')
    a('v_and_b32 v%d, 63, v0' % vL)
    a('v_lshrrev_b32 v%d, 6, v0' % vT1)
    a('v_readfirstlane_b32 s%d, v%d' % (sW, vT1))
    a('s_lshr_b32 s%d, s2, 4' % sKVH)
    a('s_and_b32 s%d, s2, 15' % sJ)
    a('s_lshl_b32 s%d, s%d, 2' % (sWID, sJ))
    a('s_add_u32 s%d, s%d, s%d' % (sWID, sWID, sW))
    a('s_sub_u32 s%d, s2, 64' % sT0)
    a('s_lshr_b32 s%d, s%d, 4' % (sT1, sT0))
    a('s_lshl_b32 s%d, s%d, 4' % (sT1, sT1))
    a('s_and_b32 s%d, s%d, 7' % (sT2, sT0))
    a('s_lshl_b32 s%d, s%d, 1' % (sT2, sT2))
    a('s_or_b32 s%d, s%d, s%d' % (sT1, sT1, sT2))
    a('s_bfe_u32 s%d, s%d, 0x10003' % (sT2, sT0))
    a('s_or_b32 s%d, s%d, s%d' % (sT1, sT1, sT2))
    a('s_mov_b32 s%d, 2' % sROLE)
    a('s_cmp_lt_u32 s2, 208')
    a('s_cselect_b32 s%d, 1, s%d' % (sROLE, sROLE))
    a('s_cmp_lt_u32 s2, 64')
    a('s_cselect_b32 s%d, 0, s%d' % (sROLE, sROLE))
    a('s_cselect_b32 s%d, s2, s%d' % (sSL, sT1))
    a('s_cselect_b32 s%d, 7, 6' % sT0)
    a('s_cselect_b32 s%d, 64, 0' % sDB)
    a('s_movk_i32 s%d, 8192' % sT1)
    a('s_movk_i32 s%d, 9216' % sT2)
    a('s_cselect_b32 s%d, s%d, s%d' % (sSTR, sT1, sT2))
    a('s_lshl_b32 s%d, s%d, s%d' % (sCOLA, sSL, sT0))
    a('s_lshl_b32 s%d, s%d, 6' % (sSTEP, sSTR))
    a('s_mov_b32 s%d, 0x%08x' % (sLOG2E, LOG2E))
    a('s_mov_b32 s%d, 0x%08x' % (sSCALE, SCALE))
    a('v_lshlrev_b32 v%d, 1, v%d' % (vT1, vL))
    a('v_lshrrev_b32 v%d, 2, v0' % vT2)
    a('v_lshlrev_b32 v%d, 1, v%d' % (vT3, vT2))
    a('v_mul_lo_u32 v%d, v%d, s%d' % (vA1, vT2, sSTR))
    a('v_and_b32 v%d, 3, v0' % vT4)
    a('v_lshl_add_u32 v%d, v%d, 4, v%d' % (vA1, vT4, vA1))
    a('v_add_u32 v%d, s%d, v%d' % (vA1, sCOLA, vA1))
    a('v_add_u32 v%d, s%d, v%d' % (vA2, sDB, vA1))
    a('v_lshlrev_b32 v%d, 4, v%d' % (vOFF, vL))
    a('s_waitcnt lgkmcnt(0)')
    mk_srd(sX, pX, 1152)
    for i in range(9):
        a('buffer_load_ushort v%d, v%d, %s, 0 offen offset:%d' % (XR + i, vT1, srd(sX), i * 128))
    for i in range(9):
        a('buffer_load_ushort v%d, v%d, %s, 0 offen offset:%d' % (XG + i, vT3, srd(sX), i * 128))
    mx = a.vm_mark()
    a('s_cmp_eq_u32 s%d, 0' % sROLE)
    a('s_cselect_b32 s%d, s%d, s%d' % (sA, pWQ, pWG))
    a('s_cselect_b32 s%d, s%d, s%d' % (sA + 1, pWQ + 1, pWG + 1))
    a('s_cselect_b32 s%d, s%d, s%d' % (sB, pWQ, pWU))
    a('s_cselect_b32 s%d, s%d, s%d' % (sB + 1, pWQ + 1, pWU + 1))
    a('s_mov_b32 s%d, 0x%x' % (sT0, 576 * 9216))
    a('s_cselect_b32 s%d, 0x%x, s%d' % (sA + 2, 576 * 8192, sT0))
    a('s_cmp_eq_u32 s%d, 2' % sROLE)
    a('s_cselect_b32 s%d, 0, s%d' % (sA + 2, sA + 2))
    a('s_mov_b32 s%d, s%d' % (sB + 2, sA + 2))
    a('s_mov_b32 s%d, 0x00020000' % (sA + 3))
    a('s_mov_b32 s%d, 0x00020000' % (sB + 3))
    a('s_mov_b32 s%d, 0' % sOFFS)
    wmarks = []
    for i in range(9):
        a('buffer_load_dwordx4 %s, v%d, %s, s%d offen%s' % (vr(WREG + 8 * i), vA1, srd(sA), sOFFS, WNT))
        a('buffer_load_dwordx4 %s, v%d, %s, s%d offen%s' % (vr(WREG + 8 * i + 4), vA2, srd(sB), sOFFS, WNT))
        wmarks.append(a.vm_mark())
        if i < 8:
            a('s_add_u32 s%d, s%d, s%d' % (sOFFS, sOFFS, sSTEP))
    a('s_lshl_b32 s%d, s%d, 24' % (sT0, sKVH))
    mk_srd(sK, pK, 1 << 24, sT0)
    mk_srd(sV, pV, 1 << 24, sT0)
    mk_srd(sWS, pWS, WS_SIZE)
    mk_srd(sDBG, pDBG, 256)
    mk_srd(sOUT, pOUT, 1152)
    mk_srd(sWO, pWO, 4096 * 1152)
    mk_srd(sWD, pWD, None)
    a('s_cmp_eq_u32 s%d, 1' % sROLE)
    a('s_cselect_b32 s%d, 0x%x, 0' % (sWD + 2, 4608 * 1152))
    stamp()

    def ring_prefetch():
        a('s_lshl_b32 s%d, s%d, 13' % (sNXT, sWID))
        a('s_add_u32 s%d, s%d, 4096' % (sNX2, sNXT))
        ring_load(0, False, sNXT)
        ring_load(1, True, sNXT)
        ring_load(2, False, sNX2)
        ring_load(3, True, sNX2)

    if ring_early:
        ring_prefetch()
    a('v_mul_u32_u24 v%d, 911, v0' % vT2)
    a('v_lshrrev_b32 v%d, 16, v%d' % (vT2, vT2))
    a('v_mul_u32_u24 v%d, 72, v%d' % (vT3, vT2))
    a('v_sub_u32 v%d, v0, v%d' % (vT3, vT3))
    a('v_mul_u32_u24 v%d, 1152, v%d' % (vT4, vT2))
    a('v_lshl_add_u32 v%d, v%d, 4, v%d' % (vT4, vT3, vT4))
    a('v_cmp_gt_u32 vcc, 216, v0')
    a('v_cndmask_b32 v%d, -16, v%d, vcc' % (vT4, vT4))
    a('v_cmp_gt_u32 vcc, 144, v0')
    a('v_cndmask_b32 v%d, -16, v%d, vcc' % (vCLR, vT4))
    a('s_mul_i32 s%d, s%d, %d' % (sOFFS, sSL, 32 * 1152))
    for i in range(11):
        a('buffer_load_dwordx4 %s, v%d, %s, s%d offen%s' % (vr(WD + 4 * i), vT4 if i < 10 else vCLR, srd(sWD), sOFFS, WNT))
        if i < 10:
            a('s_add_u32 s%d, s%d, 3456' % (sOFFS, sOFFS))
    mwd = a.vm_mark()
    a.vm_wait(mx)
    for i in range(9):
        a('v_lshlrev_b32 v%d, 16, v%d' % (XR + i, XR + i))
        a('v_lshlrev_b32 v%d, 16, v%d' % (XG + i, XG + i))
    a('v_add_f32 v%d, v%d, v%d' % (vT1, XR, XR + 1))
    for i in range(2, 9):
        a('v_add_f32 v%d, v%d, v%d' % (vT1, vT1, XR + i))
    allreduce(vT1, 'v_add_f32', vAL)
    a('v_mul_f32 v%d, 0x%08x, v%d' % (vT1, f2u(1.0 / 576), vT1))
    a('v_sub_f32 v%d, v%d, v%d' % (XR, XR, vT1))
    a('v_mul_f32 v%d, v%d, v%d' % (vM, XR, XR))
    for i in range(1, 9):
        a('v_sub_f32 v%d, v%d, v%d' % (XR + i, XR + i, vT1))
        a('v_fmac_f32 v%d, v%d, v%d' % (vM, XR + i, XR + i))
    allreduce(vM, 'v_add_f32', vAL)
    a('v_mul_f32 v%d, 0x%08x, v%d' % (vM, f2u(1.0 / 576), vM))
    rnd_hi(vT1, vT1)
    rnd_hi(vM, vM)
    a('v_add_f32 v%d, 0x%08x, v%d' % (vM, f2u(1e-5), vM))
    rnd_hi(vM, vM)
    a('v_sqrt_f32 v%d, v%d' % (vM, vM))
    rnd_hi(vM, vM)
    a('v_rcp_f32 v%d, v%d' % (vLs, vM))
    for i in range(9):
        a('v_sub_f32 v%d, v%d, v%d' % (XH + i, XG + i, vT1))
        rnd_hi(XH + i, XH + i)
        a('v_mul_f32 v%d, v%d, v%d' % (XL + i, XH + i, vLs))
        a('v_fma_f32 v%d, -v%d, v%d, v%d' % (XH + i, XL + i, vM, XH + i))
        a('v_fmac_f32 v%d, v%d, v%d' % (XL + i, XH + i, vLs))
        a('v_cvt_pk_bf16_f32 v%d, v%d, v%d' % (XL + i, XL + i, XL + i))
        a('v_and_b32 v%d, 0xffff0000, v%d' % (XH + i, XL + i))
        a('v_and_b32 v%d, 0xffff, v%d' % (XL + i, XL + i))

    def idx(stream, c):
        return 4 * (c & 3) + (0 if c < 4 else 2) + stream
    for i in range(9):
        a.vm_wait(wmarks[i])
        for st in range(2):
            for c in range(8):
                src = WREG + 8 * i + 4 * st + (c >> 1)
                xs = (XH if c & 1 else XL) + i
                acc = AC + idx(st, c)
                a('v_dot2_f32_bf16 v%d, v%d, v%d, %s' % (acc, src, xs, ('v%d' % acc) if i else '0'))
    if not ring_early:
        ring_prefetch()
    a('v_lshlrev_b32 v%d, 4, v0' % vA1)
    a('v_cmp_gt_u32 vcc, 72, v0')
    a('v_cndmask_b32 v%d, -16, v%d, vcc' % (vA1, vA1))
    a('s_mul_i32 s%d, s2, %d' % (sOFFS, 16 * 1152))
    for i in range(16):
        a('buffer_load_dwordx4 %s, v%d, %s, s%d offen%s' % (vr(WREG + 4 * i), vA1, srd(sWO), sOFFS, WNT))
        if i < 15:
            a('s_add_u32 s%d, s%d, 1152' % (sOFFS, sOFFS))
    a('s_cmp_eq_u32 s%d, 2' % sROLE)
    a('s_cbranch_scc1 L_HEADJOIN')
    for k in range(8):
        a('v_permlane32_swap_b32 v%d, v%d' % (AC + 2 * k, AC + 2 * k + 1))
    for k in range(8):
        a('v_add_f32 v%d, v%d, v%d' % (AC + 2 * k, AC + 2 * k, AC + 2 * k + 1))
    for k in range(4):
        a('v_permlane16_swap_b32 v%d, v%d' % (AC + 4 * k, AC + 4 * k + 2))
    for k in range(4):
        a('v_add_f32 v%d, v%d, v%d' % (B1 + k, AC + 4 * k, AC + 4 * k + 2))
    for s in (8, 4):
        for k in range(4):
            a('v_add_f32_dpp v%d, v%d, v%d row_ror:%d %s' % (B1 + k, B1 + k, B1 + k, s, DPPM))
    a('v_and_b32 v%d, 3, v%d' % (vT1, vL))
    a('v_lshlrev_b32 v%d, 5, v%d' % (vT1, vT1))
    a('v_and_b32 v%d, 16, v%d' % (vAL, vL))
    a('v_add_u32 v%d, v%d, v%d' % (vT1, vT1, vAL))
    a('v_and_b32 v%d, 32, v%d' % (vAL, vL))
    a('v_lshl_add_u32 v%d, v%d, 2, v%d' % (vT1, vAL, vT1))
    a('s_lshl_b32 s%d, s%d, 8' % (sT0, sW))
    a('v_add_u32 v%d, s%d, v%d' % (vT1, sT0, vT1))
    a('s_mov_b32 exec_lo, 0x000f000f')
    a('s_mov_b32 exec_hi, 0x000f000f')
    a('ds_write_b128 v%d, %s offset:%d' % (vT1, vr(B1), WBUF))
    a('s_mov_b64 exec, -1')
    a('s_waitcnt lgkmcnt(0)')
    a('s_barrier')
    a('s_cmp_eq_u32 s%d, 1' % sROLE)
    a('s_cbranch_scc1 L_FFN')
    vm_at_branch = a.vm_issued
    a('s_cmp_lg_u32 s%d, 0' % sW)
    a('s_cbranch_scc1 L_HEADJOIN')
    a('v_lshlrev_b32 v%d, 3, v%d' % (vT1, vL))
    a('s_mov_b64 exec, 0xffffffff')
    for w in range(4):
        a('ds_read_b64 v[%d:%d], v%d offset:%d' % (AC + 2 * w, AC + 2 * w + 1, vT1, WBUF + w * 256))
    a('v_lshlrev_b32 v%d, 2, v%d' % (vT1, vL))
    a('s_waitcnt lgkmcnt(0)')
    for e in range(2):
        a('v_add_f32 v%d, v%d, v%d' % (AC + e, AC + e, AC + 2 + e))
        a('v_add_f32 v%d, v%d, v%d' % (AC + 4 + e, AC + 4 + e, AC + 6 + e))
        a('v_add_f32 v%d, v%d, v%d' % (AC + e, AC + e, AC + 4 + e))
    a('v_cvt_pk_bf16_f32 v%d, v%d, v%d' % (AC, AC, AC + 1))
    a('buffer_store_dword v%d, v%d, %s, s%d offen sc1' % (AC, vT1, srd(sWS), sCOLA))
    a('s_mov_b64 exec, -1')
    a('s_lshr_b32 s%d, s%d, 2' % (sT0, sSL))
    a('s_lshl_b32 s%d, s%d, 3' % (sT0, sT0))
    a('v_mov_b32 v%d, 1' % vT1)
    a('v_mov_b32 v%d, 0' % vZ)
    a('s_waitcnt vmcnt(0)')
    a('s_mov_b64 exec, 1')
    a('buffer_atomic_add v%d, v%d, %s, s%d offen' % (vT1, vZ, srd(sDBG), sT0))
    a('s_mov_b64 exec, -1')
    a.fence()
    a('s_branch L_HEADJOIN')
    a.label('L_FFN')
    a.vm_issued = vm_at_branch
    a('v_and_b32 v%d, 31, v%d' % (vT1, vL))
    a('v_lshlrev_b32 v%d, 2, v%d' % (vT1, vT1))
    for w in range(4):
        a('ds_read_b32 v%d, v%d offset:%d' % (AC + w, vT1, WBUF + w * 256))
        a('ds_read_b32 v%d, v%d offset:%d' % (AC + 4 + w, vT1, WBUF + w * 256 + 128))
    a('s_lshl_b32 s%d, s%d, 7' % (sT0, sW))
    a('v_add_u32 v%d, s%d, v%d' % (vT1, sT0, vT1))
    a('s_waitcnt lgkmcnt(0)')
    for b in (AC, AC + 4):
        a('v_add_f32 v%d, v%d, v%d' % (b, b, b + 1))
        a('v_add_f32 v%d, v%d, v%d' % (b + 2, b + 2, b + 3))
        a('v_add_f32 v%d, v%d, v%d' % (b, b, b + 2))
        rnd_hi(b, b)
    a('v_mul_f32 v%d, s%d, v%d' % (AC + 1, sLOG2E, AC))
    a('v_exp_f32 v%d, -v%d' % (AC + 1, AC + 1))
    a('v_add_f32 v%d, 1.0, v%d' % (AC + 1, AC + 1))
    a('v_rcp_f32 v%d, v%d' % (AC + 1, AC + 1))
    a('v_mul_f32 v%d, v%d, v%d' % (AC + 1, AC + 1, AC))
    rnd_hi(AC + 1, AC + 1)
    a('v_mul_f32 v%d, v%d, v%d' % (AC + 1, AC + 1, AC + 4))
    rnd_hi(AC + 1, AC + 1)
    a('ds_write_b32 v%d, v%d offset:%d' % (vT1, AC + 1, HBUF))
    a('v_lshlrev_b32 v%d, 2, v%d' % (vT1, vT2))
    a('v_add_u32 v%d, s%d, v%d' % (vT1, sT0, vT1))
    HH = AC
    for i in range(11):
        a('ds_read_b32 v%d, v%d offset:%d' % (HH + i, vT1, HBUF + 12 * i))
    a('v_mul_u32_u24 v%d, 2304, v%d' % (vT1, vT2))
    a('v_lshl_add_u32 v%d, v%d, 5, v%d' % (vT1, vT3, vT1))
    a('s_waitcnt lgkmcnt(0)')
    HL = XR
    for i in range(11):
        a('v_lshrrev_b32 v%d, 16, v%d' % (HL + i, HH + i))
    a('v_cmp_gt_u32 vcc, 144, v0')
    a('v_cndmask_b32 v%d, 0, v%d, vcc' % (HH + 10, HH + 10))
    a('v_cndmask_b32 v%d, 0, v%d, vcc' % (HL + 10, HL + 10))
    a.vm_wait(mwd)
    for i in range(11):
        for c in range(8):
            a('v_dot2_f32_bf16 v%d, v%d, v%d, %s' % (B0 + c, WD + 4 * i + (c >> 1), (HH if c & 1 else HL) + i, ('v%d' % (B0 + c)) if i else '0'))
    a('ds_write_b128 v%d, %s offset:%d' % (vT1, vr(B0), ZBUF))
    a('ds_write_b128 v%d, %s offset:%d' % (vT1, vr(B0 + 4), ZBUF + 16))
    a.fence()
    a.label('L_HEADJOIN')
    stamp()
    a('v_mov_b32 v%d, 0' % vZ)
    a('s_lshl_b32 s%d, s%d, 8' % (sCNT, sKVH))
    a('s_add_u32 s%d, s%d, 0x%x' % (sCNT, sCNT, C_BASE))
    a('s_cmp_lg_u32 s%d, 0' % sW)
    a('s_cbranch_scc1 L_NOCLR')
    for k in range(4):
        a('v_mov_b32 v%d, -1' % (B1 + k))
    a('v_lshlrev_b32 v%d, 4, v%d' % (vT1, vL))
    a('s_lshl_b32 s%d, s2, 11' % sT0)
    a('s_add_u32 s%d, s%d, 0x%x' % (sT0, sT0, O_BASE))
    a('buffer_store_dwordx4 %s, v%d, %s, s%d offen sc1' % (vr(B1), vT1, srd(sWS), sT0))
    a('buffer_store_dwordx4 %s, v%d, %s, s%d offen offset:1024 sc1' % (vr(B1), vT1, srd(sWS), sT0))
    a('s_cmp_lg_u32 s%d, 0' % sJ)
    a('s_cbranch_scc1 L_NOCNT')
    a('s_mov_b64 exec, 1')
    a('buffer_store_dword v%d, v%d, %s, s%d offen sc1' % (vZ, vZ, srd(sWS), sCNT))
    a('s_mov_b64 exec, -1')
    a.label('L_NOCNT')
    a('s_cmp_ge_u32 s2, 144')
    a('s_cbranch_scc1 L_NOCLR')
    a('s_lshl_b32 s%d, s2, 12' % sT0)
    a('s_add_u32 s%d, s%d, 0x%x' % (sT0, sT0, Y_BASE))
    a('s_add_u32 s%d, s%d, 0x%x' % (sT1, sT0, Z_BASE - Y_BASE))
    for k in range(4):
        a('buffer_store_dwordx4 %s, v%d, %s, s%d offen offset:%d sc1' % (vr(B1), vT1, srd(sWS), sT0, k * 1024))
    for k in range(3):
        a('buffer_store_dwordx4 %s, v%d, %s, s%d offen offset:%d sc1' % (vr(B1), vT1, srd(sWS), sT1, k * 1024))
    a.fence()
    a.label('L_NOCLR')
    a('v_and_b32 v%d, 7, v%d' % (vT1, vL))
    a('v_lshrrev_b32 v%d, 1, v%d' % (vT2, vT1))
    a('v_and_b32 v%d, 1, v%d' % (vT3, vT1))
    a('v_lshlrev_b32 v%d, 4, v%d' % (vT3, vT3))
    a('v_mov_b32 v%d, 0xffff' % vT4)
    a('v_lshlrev_b32 v%d, v%d, v%d' % (vT4, vT3, vT4))
    for r in range(4):
        a('v_cmp_eq_u32 vcc, %d, v%d' % (r, vT2))
        a('v_cndmask_b32 v%d, 0, v%d, vcc' % (MK + r, vT4))
    for r in range(4):
        a('v_mov_b32 v%d, 0' % (ACC + r))
    a('v_mov_b32 v%d, 0xff800000' % vM)
    a('v_mov_b32 v%d, 0' % vLs)
    a('s_sub_u32 s%d, s%d, 64' % (sT0, sWID))
    a('v_mov_b32 v%d, s%d' % (vAT, sT0))
    a('v_and_b32 v%d, 15, v%d' % (vT1, vL))
    a('v_lshlrev_b32 v%d, 4, v%d' % (vT1, vT1))
    a('v_and_b32 v%d, 8, v%d' % (vT2, vL))
    a('v_lshl_add_u32 v%d, v%d, 5, v%d' % (vT1, vT2, vT1))
    a('v_xor_b32 v%d, 256, v%d' % (vT2, vT1))
    a('s_lshl_b32 s%d, s%d, 9' % (sT1, sKVH))
    a('s_lshl_b32 s%d, s%d, 3' % (sT0, sKVH))
    a('s_mov_b32 s%d, %d' % (sSPIN, spin))
    a.fence()
    a.label('L_QPOLL')
    a('buffer_load_dword v%d, v%d, %s, s%d offen sc1' % (vT3, vZ, srd(sDBG), sT0))
    a('s_waitcnt vmcnt(0)')
    a('v_readfirstlane_b32 s%d, v%d' % (sT2, vT3))
    a('s_sub_u32 s%d, s%d, 1' % (sSPIN, sSPIN))
    a('s_cbranch_scc1 L_QGO')
    a('s_cmp_ge_u32 s%d, 4' % sT2)
    a('s_cbranch_scc0 L_QPOLL')
    a.label('L_QGO')
    a('buffer_load_dwordx4 %s, v%d, %s, s%d offen sc1' % (vr(qA), vT1, srd(sWS), sT1))
    a('buffer_load_dwordx4 %s, v%d, %s, s%d offen sc1' % (vr(qB), vT2, srd(sWS), sT1))
    a('s_cmp_lg_u32 s%d, 0' % sW)
    a('s_cbranch_scc1 L_NOSIG')
    a('v_mov_b32 v%d, 1' % vT3)
    a('s_mov_b64 exec, 1')
    a('buffer_atomic_add v%d, v%d, %s, 0 offen offset:%d' % (vT3, vZ, srd(sDBG), CLR_OFF))
    a('s_mov_b64 exec, -1')
    a.fence()
    a.label('L_NOSIG')
    a('s_mov_b32 s%d, 0x05040100' % sT0)
    a('s_mov_b32 s%d, 0x07060302' % sT1)
    for p in range(8):
        for d in range(4):
            r0, r1 = WREG + 8 * p + d, WREG + 8 * p + 4 + d
            a('v_perm_b32 v%d, v%d, v%d, s%d' % (vT3, r1, r0, sT0))
            a('v_perm_b32 v%d, v%d, v%d, s%d' % (r1, r1, r0, sT1))
            a('v_mov_b32 v%d, v%d' % (r0, vT3))
    a('s_waitcnt vmcnt(0)')
    stamp()
    a('s_mov_b32 s%d, 0' % sIT)
    a.fence()
    a.raw('.p2align 6')
    a.label('L_LOOP')
    a('s_waitcnt vmcnt(12)')
    a('s_cmp_ge_u32 s%d, %d' % (sIT, NS - 2))
    a('s_cbranch_scc1 L_DYN')
    a('s_add_u32 s%d, s%d, 1' % (sT0, sIT))
    a('s_lshl_b32 s%d, s%d, 6' % (sT0, sT0))
    a('s_add_u32 s%d, s%d, s%d' % (sT0, sT0, sWID))
    a('s_cmp_lg_u32 s%d, %d' % (sIT, NS - 3))
    a('s_cbranch_scc1 L_GOTID')
    a('buffer_load_dword v%d, v%d, %s, 0 offen offset:%d sc1' % (vCLR, vZ, srd(sDBG), CLR_OFF))
    a('s_branch L_GOTID')
    a.label('L_DYN')
    a('s_cmp_lg_u32 s%d, %d' % (sIT, NS - 2))
    a('s_cbranch_scc1 L_DYN2')
    a('v_readfirstlane_b32 s%d, v%d' % (sT2, vCLR))
    a('s_mov_b32 s%d, %d' % (sSPIN, spin))
    a('s_cmp_ge_u32 s%d, 256' % sT2)
    a('s_cbranch_scc1 L_DYN2')
    a.label('L_CLRPOLL')
    a('buffer_load_dword v%d, v%d, %s, 0 offen offset:%d sc1' % (vCLR, vZ, srd(sDBG), CLR_OFF))
    a('s_waitcnt vmcnt(0)')
    a('v_readfirstlane_b32 s%d, v%d' % (sT2, vCLR))
    a('s_sub_u32 s%d, s%d, 1' % (sSPIN, sSPIN))
    a('s_cbranch_scc1 L_DYN2')
    a('s_cmp_ge_u32 s%d, 256' % sT2)
    a('s_cbranch_scc0 L_CLRPOLL')
    a.label('L_DYN2')
    a('v_readfirstlane_b32 s%d, v%d' % (sT0, vAT))
    a('v_mov_b32 v%d, 1' % vAT)
    a('s_mov_b64 exec, 1')
    a('buffer_atomic_add v%d, v%d, %s, s%d offen sc0' % (vAT, vZ, srd(sWS), sCNT))
    a('s_mov_b64 exec, -1')
    a('s_add_u32 s%d, s%d, %d' % (sT0, sT0, NS * 64))
    a.label('L_GOTID')
    a('s_lshl_b32 s%d, s%d, 13' % (sNXT, sT0))
    a('s_cmp_lt_u32 s%d, %d' % (sT0, NCH))
    a('s_cselect_b32 s%d, s%d, 0x7ff00000' % (sNXT, sNXT))
    a('s_add_u32 s%d, s%d, 4096' % (sNX2, sNXT))
    for s in range(R):
        if s:
            a('s_waitcnt vmcnt(12)')
        base = RING + s * 16
        soff = sNXT if s < 2 else sNX2
        if s % 2 == 0:
            for d in range(4):
                for u in range(4):
                    a('v_dot2_f32_bf16 v%d, v%d, v%d, %s' % (X + u, base + 4 * u + d, qA + d, ('v%d' % (X + u)) if d else '0'))
                for u in range(4):
                    a('v_dot2_f32_bf16 v%d, v%d, v%d, %s' % (Y + u, base + 4 * u + d, qB + d, ('v%d' % (Y + u)) if d else '0'))
            ring_load(s, False, soff)
            for u in range(4):
                a('v_add_f32_dpp v%d, v%d, v%d row_ror:8 %s' % (X + u, Y + u, X + u, DPPM))
            for u in range(4):
                a('v_add_f32_dpp v%d, v%d, v%d row_half_mirror %s' % (X + u, X + u, X + u, DPPM))
            for u in range(4):
                a('v_add_f32_dpp v%d, v%d, v%d quad_perm:[1,0,3,2] %s' % (X + u, X + u, X + u, DPPM))
            for u in range(4):
                a('v_add_f32_dpp v%d, v%d, v%d quad_perm:[2,3,0,1] %s' % (X + u, X + u, X + u, DPPM))
            for pr in range(2):
                a('v_cvt_pk_bf16_f32 v%d, v%d, v%d' % (Y + pr, X + 2 * pr, X + 2 * pr + 1))
            for pr in range(2):
                a('v_lshlrev_b32 v%d, 16, v%d' % (X + 2 * pr, Y + pr))
                a('v_and_b32 v%d, 0xffff0000, v%d' % (X + 2 * pr + 1, Y + pr))
            for u in range(4):
                a('v_mul_f32 v%d, s%d, v%d' % (X + u, sSCALE, X + u))
            for pr in range(2):
                a('v_cvt_pk_bf16_f32 v%d, v%d, v%d' % (Y + pr, X + 2 * pr, X + 2 * pr + 1))
            for pr in range(2):
                a('v_lshlrev_b32 v%d, 16, v%d' % (X + 2 * pr, Y + pr))
                a('v_and_b32 v%d, 0xffff0000, v%d' % (X + 2 * pr + 1, Y + pr))
            a('v_max3_f32 v%d, v%d, v%d, v%d' % (vT1, X, X + 1, X + 2))
            a('v_max3_f32 v%d, v%d, v%d, v%d' % (vT1, vT1, X + 3, vM))
            for sw in ('v_permlane16_swap_b32', 'v_permlane32_swap_b32'):
                a('v_mov_b32 v%d, v%d' % (vT2, vT1))
                a('%s v%d, v%d' % (sw, vT1, vT2))
                a('v_max_f32 v%d, v%d, v%d' % (vT1, vT1, vT2))
            a('v_sub_f32 v%d, v%d, v%d' % (vAL, vM, vT1))
            a('v_mov_b32 v%d, v%d' % (vM, vT1))
            a('v_mul_f32 v%d, s%d, v%d' % (vAL, sLOG2E, vAL))
            a('v_mul_f32 v%d, s%d, v%d' % (vT1, sLOG2E, vT1))
            a('v_exp_f32 v%d, v%d' % (vAL, vAL))
            for u in range(4):
                a('v_fma_f32 v%d, v%d, s%d, -v%d' % (X + u, X + u, sLOG2E, vT1))
            for u in range(4):
                a('v_exp_f32 v%d, v%d' % (X + u, X + u))
            a('v_add_f32 v%d, v%d, v%d' % (vT1, X, X + 1))
            a('v_add_f32 v%d, v%d, v%d' % (vT2, X + 2, X + 3))
            for u in range(4):
                a('v_cvt_pk_bf16_f32 v%d, v%d, v%d' % (P2 + u, X + u, X + u))
            a('v_add_f32 v%d, v%d, v%d' % (vT1, vT1, vT2))
            a('v_fma_f32 v%d, v%d, v%d, v%d' % (vLs, vLs, vAL, vT1))
            for r in range(4):
                a('v_mul_f32 v%d, v%d, v%d' % (ACC + r, ACC + r, vAL))
        else:
            for u in range(4):
                Bx = B0 if u % 2 == 0 else B1
                for r in range(4):
                    a('v_and_b32 v%d, v%d, v%d' % (Bx + r, P2 + u, MK + r))
                a('v_mfma_f32_16x16x32_bf16 %s, %s, %s, %s' % (vr(ACC), vr(base + 4 * u), vr(Bx), vr(ACC)))
            ring_load(s, True, soff)
    a('s_add_u32 s%d, s%d, 1' % (sIT, sIT))
    a('s_cmp_lt_u32 s%d, 0x7ff00000' % sNXT)
    a.fence()
    a('s_cbranch_scc1 L_LOOP')
    stamp()
    for sw in ('v_permlane16_swap_b32', 'v_permlane32_swap_b32'):
        a('v_mov_b32 v%d, v%d' % (vT2, vLs))
        a('%s v%d, v%d' % (sw, vLs, vT2))
        a('v_add_f32 v%d, v%d, v%d' % (vLs, vLs, vT2))
    a('v_lshrrev_b32 v%d, 4, v%d' % (vT1, vL))
    a('v_lshlrev_b32 v%d, 7, v%d' % (vT1, vT1))
    a('v_and_b32 v%d, 7, v%d' % (vT2, vL))
    a('v_lshl_add_u32 v%d, v%d, 2, v%d' % (vT1, vT2, vT1))
    a('v_and_b32 v%d, 8, v%d' % (vT2, vL))
    a('v_lshl_add_u32 v%d, v%d, 6, v%d' % (vT1, vT2, vT1))
    a('s_lshl_b32 s%d, s%d, 10' % (sT0, sW))
    a('v_add_u32 v%d, s%d, v%d' % (vT1, sT0, vT1))
    for r in range(4):
        a('ds_write_b32 v%d, v%d offset:%d' % (vT1, ACC + r, CBUF + r * 32))
    a('s_lshl_b32 s%d, s%d, 4' % (sT0, sW))
    a('v_add_u32 v%d, s%d, v%d' % (vT2, sT0, vT2))
    a('s_mov_b64 exec, 0x101')
    a('ds_write_b64 v%d, v[%d:%d] offset:%d' % (vT2, vM, vLs, MLBUF))
    a('s_mov_b64 exec, -1')
    a('s_waitcnt vmcnt(0) lgkmcnt(0)')
    a('s_barrier')
    a('s_cmp_lg_u32 s%d, 0' % sW)
    a('s_cbranch_scc1 L_ZPUB')
    OW = RING
    MLW = RING + 16
    a('v_lshlrev_b32 v%d, 4, v%d' % (vT1, vL))
    for w in range(4):
        a('ds_read_b128 %s, v%d offset:%d' % (vr(OW + 4 * w), vT1, CBUF + w * 1024))
    a('v_lshrrev_b32 v%d, 5, v%d' % (vT2, vL))
    a('v_lshlrev_b32 v%d, 3, v%d' % (vT2, vT2))
    for w in range(4):
        a('ds_read_b64 v[%d:%d], v%d offset:%d' % (MLW + 2 * w, MLW + 2 * w + 1, vT2, MLBUF + w * 16))
    a('v_lshrrev_b32 v%d, 2, v%d' % (vT3, vL))
    a('v_lshlrev_b32 v%d, 11, v%d' % (vT3, vT3))
    a('v_and_b32 v%d, 3, v%d' % (vT4, vL))
    a('v_lshl_add_u32 v%d, v%d, 4, v%d' % (vT4, vT4, vT3))
    a('s_lshl_b32 s%d, s%d, 15' % (sT0, sKVH))
    a('s_add_u32 s%d, s%d, 0x%x' % (sT0, sT0, O_BASE))
    a('s_lshl_b32 s%d, s%d, 6' % (sT1, sJ))
    a('s_add_u32 s%d, s%d, s%d' % (sT1, sT1, sT0))
    a('s_lshl_b32 s%d, s%d, 4' % (sT2, sJ))
    a('s_add_u32 s%d, s%d, s%d' % (sT2, sT2, sT0))
    a('s_waitcnt lgkmcnt(0)')
    a('v_max3_f32 v%d, v%d, v%d, v%d' % (B0, MLW, MLW + 2, MLW + 4))
    a('v_max_f32 v%d, v%d, v%d' % (B0, B0, MLW + 6))
    for w in range(4):
        a('v_sub_f32 v%d, v%d, v%d' % (MLW + 2 * w, MLW + 2 * w, B0))
        a('v_mul_f32 v%d, s%d, v%d' % (MLW + 2 * w, sLOG2E, MLW + 2 * w))
        a('v_exp_f32 v%d, v%d' % (MLW + 2 * w, MLW + 2 * w))
    a('v_mul_f32 v%d, v%d, v%d' % (B0 + 1, MLW, MLW + 1))
    for w in range(1, 4):
        a('v_fmac_f32 v%d, v%d, v%d' % (B0 + 1, MLW + 2 * w, MLW + 2 * w + 1))
    for k in range(4):
        a('v_mul_f32 v%d, v%d, v%d' % (B1 + k, OW + k, MLW))
        for w in range(1, 4):
            a('v_fmac_f32 v%d, v%d, v%d' % (B1 + k, OW + 4 * w + k, MLW + 2 * w))
    for k in range(4):
        a('v_min_u32 v%d, -2, v%d' % (B1 + k, B1 + k))
    a('v_min_u32 v%d, -2, v%d' % (B0, B0))
    a('v_min_u32 v%d, -2, v%d' % (B0 + 1, B0 + 1))
    a('buffer_store_dwordx4 %s, v%d, %s, s%d offen sc1' % (vr(B1), vT4, srd(sWS), sT1))
    a('s_mov_b32 exec_lo, 0x11111111')
    a('s_mov_b32 exec_hi, 0x11111111')
    a('buffer_store_dwordx2 v[%d:%d], v%d, %s, s%d offen offset:1024 sc1' % (B0, B0 + 1, vT3, srd(sWS), sT2))
    a('s_mov_b64 exec, -1')
    a.fence()
    a('s_branch L_HOP1')
    a.label('L_ZPUB')
    a('s_cmp_lg_u32 s%d, 1' % sROLE)
    a('s_cbranch_scc1 L_ZDONE')
    a('v_subrev_u32 v%d, 64, v0' % vT1)
    a('v_lshlrev_b32 v%d, 4, v%d' % (vT2, vT1))
    a('v_cmp_gt_u32 vcc, 144, v%d' % vT1)
    a('s_and_saveexec_b64 s[%d:%d], vcc' % (sM0, sM0 + 1))
    a('s_cbranch_execz L_ZSKIP')
    for g in range(3):
        a('ds_read_b128 %s, v%d offset:%d' % (vr(RING + 4 * g), vT2, ZBUF + g * 2304))
    a('v_lshlrev_b32 v%d, 12, v%d' % (vT1, vT1))
    a('s_lshl_b32 s%d, s%d, 4' % (sT0, sSL))
    a('s_add_u32 s%d, s%d, 0x%x' % (sT0, sT0, Z_BASE))
    a('s_waitcnt lgkmcnt(0)')
    for k in range(4):
        a('v_add_f32 v%d, v%d, v%d' % (RING + k, RING + k, RING + 4 + k))
        a('v_add_f32 v%d, v%d, v%d' % (RING + k, RING + k, RING + 8 + k))
        a('v_min_u32 v%d, -2, v%d' % (RING + k, RING + k))
    a('buffer_store_dwordx4 %s, v%d, %s, s%d offen sc1' % (vr(RING), vT1, srd(sWS), sT0))
    a.label('L_ZSKIP')
    a('s_mov_b64 exec, -1')
    a.fence()
    a.label('L_ZDONE')
    a('s_cmp_ge_u32 s%d, 2' % sW)
    a('s_cbranch_scc1 L_HOP2')
    a.label('L_HOP1')
    O4 = RING + 32
    ML = RING + 36
    a('v_lshlrev_b32 v%d, 4, v%d' % (vT1, vL))
    a('v_lshrrev_b32 v%d, 2, v%d' % (vT2, vL))
    a('v_lshlrev_b32 v%d, 4, v%d' % (vT2, vT2))
    a('s_lshl_b32 s%d, s2, 11' % sINB)
    a('s_add_u32 s%d, s%d, 0x%x' % (sINB, sINB, O_BASE))
    a('s_mov_b32 s%d, %d' % (sSPIN, spin))
    a.fence()
    a.label('L_H1POLL')
    a('buffer_load_dwordx4 %s, v%d, %s, s%d offen sc1' % (vr(O4), vT1, srd(sWS), sINB))
    a('buffer_load_dwordx2 v[%d:%d], v%d, %s, s%d offen offset:1024 sc1' % (ML, ML + 1, vT2, srd(sWS), sINB))
    a('s_waitcnt vmcnt(0)')
    a('v_max3_u32 v%d, v%d, v%d, v%d' % (vT3, O4, O4 + 1, O4 + 2))
    a('v_max3_u32 v%d, v%d, v%d, v%d' % (vT4, O4 + 3, ML, ML + 1))
    a('v_max_u32 v%d, v%d, v%d' % (vT3, vT3, vT4))
    a('v_cmp_eq_u32 vcc, -1, v%d' % vT3)
    a('s_sub_u32 s%d, s%d, 1' % (sSPIN, sSPIN))
    a('s_cbranch_scc1 L_H1GO')
    a('s_cbranch_vccnz L_H1POLL')
    a.label('L_H1GO')
    stamp()
    a('v_mov_b32 v%d, v%d' % (vT3, ML))
    allreduce(vT3, 'v_max_f32', vT4, steps=(4, 8))
    a('v_sub_f32 v%d, v%d, v%d' % (ML, ML, vT3))
    a('v_mul_f32 v%d, s%d, v%d' % (ML, sLOG2E, ML))
    a('v_exp_f32 v%d, v%d' % (ML, ML))
    a('v_mul_f32 v%d, v%d, v%d' % (ML + 1, ML + 1, ML))
    for k in range(4):
        a('v_mul_f32 v%d, v%d, v%d' % (O4 + k, O4 + k, ML))
    regs5 = [O4, O4 + 1, O4 + 2, O4 + 3, ML + 1]
    tmps5 = [B0, B0 + 1, B0 + 2, B0 + 3, B1]
    for s in (4, 8):
        for rg in regs5:
            a('v_add_f32_dpp v%d, v%d, v%d row_ror:%d %s' % (rg, rg, rg, s, DPPM))
    for sw in ('v_permlane16_swap_b32', 'v_permlane32_swap_b32'):
        for rg, t in zip(regs5, tmps5):
            a('v_mov_b32 v%d, v%d' % (t, rg))
        for rg, t in zip(regs5, tmps5):
            a('%s v%d, v%d' % (sw, rg, t))
        for rg, t in zip(regs5, tmps5):
            a('v_add_f32 v%d, v%d, v%d' % (rg, rg, t))
    a('v_rcp_f32 v%d, v%d' % (vT3, ML + 1))
    for k in range(4):
        a('v_mul_f32 v%d, v%d, v%d' % (B0 + k, O4 + k, vT3))
        a('v_fma_f32 v%d, -v%d, v%d, v%d' % (O4 + k, B0 + k, ML + 1, O4 + k))
        a('v_fmac_f32 v%d, v%d, v%d' % (B0 + k, O4 + k, vT3))
    a('v_cvt_pk_bf16_f32 v%d, v%d, v%d' % (B1, B0, B0 + 1))
    a('v_cvt_pk_bf16_f32 v%d, v%d, v%d' % (B1 + 1, B0 + 2, B0 + 3))
    for c in range(4):
        for hlf in range(2):
            a('v_readlane_b32 s%d, v%d, %d' % (sP + 2 * c + hlf, B1 + hlf, c))
    YA = RING + 40
    for p in range(8):
        for col in range(8):
            src = WREG + 8 * p + (4 if col & 1 else 0) + (col >> 1)
            a('v_dot2_f32_bf16 v%d, v%d, s%d, %s' % (YA + col, src, sP + p, ('v%d' % (YA + col)) if p else '0'))
    a('v_lshlrev_b32 v%d, 13, v0' % vT1)
    a('s_lshl_b32 s%d, s2, 4' % sT0)
    a('s_add_u32 s%d, s%d, 0x%x' % (sT0, sT0, Y_BASE))
    a('s_add_u32 s%d, s%d, 4096' % (sT1, sT0))
    for col in range(8):
        a('v_min_u32 v%d, -2, v%d' % (YA + col, YA + col))
    a('v_cmp_gt_u32 vcc, 72, v0')
    a('s_and_saveexec_b64 s[%d:%d], vcc' % (sM0, sM0 + 1))
    a('buffer_store_dwordx4 %s, v%d, %s, s%d offen sc1' % (vr(YA), vT1, srd(sWS), sT0))
    a('buffer_store_dwordx4 %s, v%d, %s, s%d offen sc1' % (vr(YA + 4), vT1, srd(sWS), sT1))
    a('s_mov_b64 exec, -1')
    a.fence()
    a.label('L_HOP2')
    a('s_cmp_ge_u32 s2, 144')
    a('s_cbranch_scc1 L_END')
    YV = RING
    ZV = RING + 4
    a('v_lshlrev_b32 v%d, 4, v0' % vT1)
    a('v_cmp_gt_u32 vcc, 144, v0')
    a('v_cndmask_b32 v%d, -16, v%d, vcc' % (vT2, vT1))
    a('s_lshl_b32 s%d, s2, 12' % sT0)
    a('s_add_u32 s%d, s%d, 0x%x' % (sT0, sT0, Y_BASE))
    a('s_add_u32 s%d, s%d, 0x%x' % (sT1, sT0, Z_BASE - Y_BASE))
    a('s_lshl_b32 s%d, s2, 3' % sT2)
    a('v_lshlrev_b32 v%d, 1, v%d' % (vA1, vL))
    a('buffer_load_ushort v%d, v%d, %s, s%d offen' % (vXO, vA1, srd(sX), sT2))
    a('s_mov_b32 s%d, %d' % (sSPIN, spin))
    a.fence()
    a.label('L_H2POLL')
    a('buffer_load_dwordx4 %s, v%d, %s, s%d offen sc1' % (vr(YV), vT1, srd(sWS), sT0))
    a('buffer_load_dwordx4 %s, v%d, %s, s%d offen sc1' % (vr(ZV), vT2, srd(sWS), sT1))
    a('s_waitcnt vmcnt(0)')
    a('v_max3_u32 v%d, v%d, v%d, v%d' % (vT3, YV, YV + 1, YV + 2))
    a('v_max3_u32 v%d, v%d, v%d, v%d' % (vT4, YV + 3, ZV, ZV + 1))
    a('v_max3_u32 v%d, v%d, v%d, v%d' % (vT3, vT3, ZV + 2, ZV + 3))
    a('v_max_u32 v%d, v%d, v%d' % (vT3, vT3, vT4))
    a('v_cmp_eq_u32 vcc, -1, v%d' % vT3)
    a('s_sub_u32 s%d, s%d, 1' % (sSPIN, sSPIN))
    a('s_cbranch_scc1 L_H2GO')
    a('s_cbranch_vccnz L_H2POLL')
    a.label('L_H2GO')
    stamp()
    for k in range(4):
        a('v_permlane32_swap_b32 v%d, v%d' % (YV + k, ZV + k))
    for k in range(4):
        a('v_add_f32 v%d, v%d, v%d' % (YV + k, YV + k, ZV + k))
    a('v_permlane16_swap_b32 v%d, v%d' % (YV, YV + 1))
    a('v_permlane16_swap_b32 v%d, v%d' % (YV + 2, YV + 3))
    a('v_add_f32 v%d, v%d, v%d' % (ZV, YV, YV + 1))
    a('v_add_f32 v%d, v%d, v%d' % (ZV + 1, YV + 2, YV + 3))
    for s in (8, 4, 2, 1):
        for k in range(2):
            a('v_add_f32_dpp v%d, v%d, v%d row_ror:%d %s' % (ZV + k, ZV + k, ZV + k, s, DPPM))
    a('v_lshrrev_b32 v%d, 1, v%d' % (vT1, vL))
    a('s_lshl_b32 s%d, s%d, 5' % (sT0, sW))
    a('v_add_u32 v%d, s%d, v%d' % (vT1, sT0, vT1))
    a('s_mov_b32 exec_lo, 0x00010001')
    a('s_mov_b32 exec_hi, 0x00010001')
    a('ds_write_b64 v%d, v[%d:%d] offset:%d' % (vT1, ZV, ZV + 1, RBUF))
    a('s_mov_b64 exec, -1')
    a('s_waitcnt lgkmcnt(0)')
    a('s_barrier')
    a('s_cmp_lg_u32 s%d, 0' % sW)
    a('s_cbranch_scc1 L_END')
    a('v_and_b32 v%d, 1, v%d' % (vT1, vL))
    a('v_lshlrev_b32 v%d, 3, v%d' % (vT1, vT1))
    a('v_and_b32 v%d, 2, v%d' % (vT2, vL))
    a('v_lshl_add_u32 v%d, v%d, 1, v%d' % (vT1, vT2, vT1))
    for w in range(4):
        a('ds_read_b32 v%d, v%d offset:%d' % (YV + w, vT1, RBUF + w * 32))
        a('ds_read_b32 v%d, v%d offset:%d' % (ZV + w, vT1, RBUF + w * 32 + 16))
    a('s_waitcnt lgkmcnt(0)')
    for base in (YV, ZV):
        a('v_add_f32 v%d, v%d, v%d' % (base, base, base + 1))
        a('v_add_f32 v%d, v%d, v%d' % (base + 2, base + 2, base + 3))
        a('v_add_f32 v%d, v%d, v%d' % (base, base, base + 2))
        rnd_hi(base, base)
    a('v_mul_f32 v%d, s%d, v%d' % (vT1, sLOG2E, ZV))
    a('v_exp_f32 v%d, -v%d' % (vT1, vT1))
    a('v_add_f32 v%d, 1.0, v%d' % (vT1, vT1))
    a('v_rcp_f32 v%d, v%d' % (vT1, vT1))
    a('v_mul_f32 v%d, v%d, v%d' % (vT1, vT1, ZV))
    rnd_hi(vT1, vT1)
    a('v_mul_f32 v%d, v%d, v%d' % (vT1, vT1, YV))
    rnd_hi(vT1, vT1)
    a('v_lshlrev_b32 v%d, 16, v%d' % (vXO, vXO))
    a('v_add_f32 v%d, v%d, v%d' % (vT1, vT1, vXO))
    a('v_cvt_pk_bf16_f32 v%d, v%d, v%d' % (vT1, vT1, vT1))
    a('s_mov_b64 exec, 15')
    a('buffer_store_short v%d, v%d, %s, s%d offen' % (vT1, vA1, srd(sOUT), sT2))
    a('s_mov_b64 exec, -1')
    stamp()
    a.label('L_END')
    a('s_endpgm')
    a.raw('.section .rodata,"a"')
    a.raw('.p2align 6')
    a.raw('.amdhsa_kernel %s_kernel' % NAME)
    a.raw('  .amdhsa_next_free_vgpr %d' % NVGPR)
    a.raw('  .amdhsa_next_free_sgpr 102')
    a.raw('  .amdhsa_accum_offset %d' % ((NVGPR + 3) // 4 * 4))
    a.raw('  .amdhsa_group_segment_fixed_size 0')
    a.raw('  .amdhsa_kernarg_size 96')
    a.raw('  .amdhsa_user_sgpr_count 2')
    a.raw('  .amdhsa_user_sgpr_kernarg_segment_ptr 1')
    a.raw('  .amdhsa_system_sgpr_workgroup_id_x 1')
    a.raw('  .amdhsa_float_denorm_mode_32 3')
    a.raw('.end_amdhsa_kernel')
    return a.text()


if __name__ == '__main__':
    ap = argparse.ArgumentParser()
    ap.add_argument('-o', default='cdna_kernels/%s.s' % NAME)
    ap.add_argument('--NS', type=int, default=26)
    ap.add_argument('--diag', action='store_true')
    ap.add_argument('--nownt', action='store_true')
    ap.add_argument('--ringlate', action='store_true')
    args = ap.parse_args()
    open(args.o, 'w').write(gen(NS=args.NS, diag=args.diag, wnt=not args.nownt, ring_early=not args.ringlate))
```

```python
import sys, argparse, struct
sys.path.insert(0, 'dev')
from asmlib import Asm

NAME = 'recurrent_scan__gqa_block_cached__swiglu_ffn__decode'

def f2u(x):
    return struct.unpack('<I', struct.pack('<f', x))[0]

LOG2E = f2u(1.4426950408889634)
SCALE = f2u(128 ** -0.5)
DPPM = 'row_mask:0xf bank_mask:0xf'

P_BASE = 0
PSTR = 13312 * 4
C_BASE = 0x38000
O_BASE = 0x40000
Y_BASE = 0x100000
Z_BASE = 0x200000
TS_BASE = 0x300000
WS_SIZE = 0x400000
HBUF, ZBUF, CBUF, MLBUF, RBUF, QBUF, WOBUF, LDS_SIZE = 0, 256, 9472, 13568, 13696, 13824, 17920, 37888
NCH = 2048


class Ctx:
    pass


def gen(NS=6, diag=False, wnt=True, spin=1 << 16, R2=False):
    a = Asm()
    NT = ' nt'
    WNT = ' nt' if wnt else ''

    def srd(n):
        return 's[%d:%d]' % (n, n + 3)

    def vr(n, k=4):
        return 'v[%d:%d]' % (n, n + k - 1)

    def rnd_hi(dst, src):
        a('v_cvt_pk_bf16_f32 v%d, v%d, v%d' % (dst, src, src))
        a('v_and_b32 v%d, 0xffff0000, v%d' % (dst, dst))

    def allreduce(reg, op, tmp, steps=(8, 4, 2, 1)):
        for s in steps:
            a('%s_dpp v%d, v%d, v%d row_ror:%d %s' % (op, reg, reg, reg, s, DPPM))
        for sw in ('v_permlane16_swap_b32', 'v_permlane32_swap_b32'):
            a('v_mov_b32 v%d, v%d' % (tmp, reg))
            a('%s v%d, v%d' % (sw, reg, tmp))
            a('%s v%d, v%d, v%d' % (op, reg, reg, tmp))

    def mk_srd(s, p, nrec, off_sgpr=None):
        if off_sgpr is None:
            a('s_mov_b32 s%d, s%d' % (s, p))
            a('s_mov_b32 s%d, s%d' % (s + 1, p + 1))
        else:
            a('s_add_u32 s%d, s%d, s%d' % (s, p, off_sgpr))
            a('s_addc_u32 s%d, s%d, 0' % (s + 1, p + 1))
        if nrec is not None:
            a('s_mov_b32 s%d, 0x%x' % (s + 2, nrec))
        a('s_mov_b32 s%d, 0x00020000' % (s + 3))

    pX, pK, pV, pWQ, pWO, pBX, pWG, pWU, pWD, pOUT, pDBG, pWS = [8 + 2 * i for i in range(12)]

    a.raw('; @launch grid=(256,1,1) block=(256,1,1) lds=%d' % LDS_SIZE)
    a.raw('.amdgcn_target "amdgcn-amd-amdhsa--gfx950"')
    a.raw('.text')
    vT, vL, vOFF, vAT = 0, 1, 2, 3
    qA, qB, MK, ACC = 4, 8, 12, 16
    vM, vLs = 20, 21
    X, Y, P2 = 22, 26, 30
    vAL, vT1 = 34, 35
    B0, B1 = 36, 40
    vT2, vT3, vT4, vZ = 44, 45, 46, 47
    RING = 48
    WREG = 112
    WD = 184
    GP = 208
    XQH, XQL, XFH, XFL, XR = 80, 90, 216, 226, 100
    vA1, vA2, vXO, vCLR, vS1, vS2 = 236, 237, 238, 239, 240, 241
    NVGPR = 242
    AC = 22
    sK, sV, sX, sWD, sWO, sWS, sOUT, sA, sDBG = [32 + 4 * i for i in range(9)]
    sW, sT0, sT1, sT2, sOFFS, sNXT, sIT, sLOG2E, sSCALE, sSPIN, sKVH, sJ, sINB, sWID, sCNT, sNX2, sBP = range(68, 85)
    sP = 8
    sTS, sM0, sT00 = 86, 88, 90
    G_OFF = 8

    def stamp(k, src=None):
        if not diag:
            return
        if src is None:
            a('s_memrealtime s[%d:%d]' % (sTS, sTS + 1))
            a('s_waitcnt lgkmcnt(0)')
            src = sTS
        a('v_mov_b32 v%d, s%d' % (vS1, src))
        a('v_mov_b32 v%d, s%d' % (vS2, src + 1))
        a('s_lshl_b32 s%d, s2, 2' % sTS)
        a('s_add_u32 s%d, s%d, s%d' % (sTS, sTS, sW))
        a('s_lshl_b32 s%d, s%d, 7' % (sTS, sTS))
        a('s_add_u32 s%d, s%d, %d' % (sTS, sTS, TS_BASE + k * 8))
        a('s_mov_b64 s[%d:%d], exec' % (sM0, sM0 + 1))
        a('s_mov_b64 exec, 1')
        a('buffer_store_dwordx2 v[%d:%d], v%d, %s, s%d offen' % (vS1, vS2, vZ, srd(sWS), sTS))
        a('s_mov_b64 exec, s[%d:%d]' % (sM0, sM0 + 1))
        a.fence()

    def ring_load(base, isV, soff):
        for u in range(4):
            a('buffer_load_dwordx4 %s, v%d, %s, s%d offen offset:%d%s' % (vr(base + u * 4), vOFF, srd(sV if isV else sK), soff, u * 1024, NT))

    def kstep(base):
        for d in range(4):
            for u in range(4):
                a('v_dot2_f32_bf16 v%d, v%d, v%d, %s' % (X + u, base + 4 * u + d, qA + d, ('v%d' % (X + u)) if d else '0'))
            for u in range(4):
                a('v_dot2_f32_bf16 v%d, v%d, v%d, %s' % (Y + u, base + 4 * u + d, qB + d, ('v%d' % (Y + u)) if d else '0'))

    def softmax_step():
        for u in range(4):
            a('v_add_f32_dpp v%d, v%d, v%d row_ror:8 %s' % (X + u, Y + u, X + u, DPPM))
        for u in range(4):
            a('v_add_f32_dpp v%d, v%d, v%d row_half_mirror %s' % (X + u, X + u, X + u, DPPM))
        for u in range(4):
            a('v_add_f32_dpp v%d, v%d, v%d quad_perm:[1,0,3,2] %s' % (X + u, X + u, X + u, DPPM))
        for u in range(4):
            a('v_add_f32_dpp v%d, v%d, v%d quad_perm:[2,3,0,1] %s' % (X + u, X + u, X + u, DPPM))
        for pr in range(2):
            a('v_cvt_pk_bf16_f32 v%d, v%d, v%d' % (Y + pr, X + 2 * pr, X + 2 * pr + 1))
        for pr in range(2):
            a('v_lshlrev_b32 v%d, 16, v%d' % (X + 2 * pr, Y + pr))
            a('v_and_b32 v%d, 0xffff0000, v%d' % (X + 2 * pr + 1, Y + pr))
        for u in range(4):
            a('v_mul_f32 v%d, s%d, v%d' % (X + u, sSCALE, X + u))
        for pr in range(2):
            a('v_cvt_pk_bf16_f32 v%d, v%d, v%d' % (Y + pr, X + 2 * pr, X + 2 * pr + 1))
        for pr in range(2):
            a('v_lshlrev_b32 v%d, 16, v%d' % (X + 2 * pr, Y + pr))
            a('v_and_b32 v%d, 0xffff0000, v%d' % (X + 2 * pr + 1, Y + pr))
        a('v_max3_f32 v%d, v%d, v%d, v%d' % (vT1, X, X + 1, X + 2))
        a('v_max3_f32 v%d, v%d, v%d, v%d' % (vT1, vT1, X + 3, vM))
        for sw in ('v_permlane16_swap_b32', 'v_permlane32_swap_b32'):
            a('v_mov_b32 v%d, v%d' % (vT2, vT1))
            a('%s v%d, v%d' % (sw, vT1, vT2))
            a('v_max_f32 v%d, v%d, v%d' % (vT1, vT1, vT2))
        a('v_sub_f32 v%d, v%d, v%d' % (vAL, vM, vT1))
        a('v_mov_b32 v%d, v%d' % (vM, vT1))
        a('v_mul_f32 v%d, s%d, v%d' % (vAL, sLOG2E, vAL))
        a('v_mul_f32 v%d, s%d, v%d' % (vT1, sLOG2E, vT1))
        a('v_exp_f32 v%d, v%d' % (vAL, vAL))
        for u in range(4):
            a('v_fma_f32 v%d, v%d, s%d, -v%d' % (X + u, X + u, sLOG2E, vT1))
        for u in range(4):
            a('v_exp_f32 v%d, v%d' % (X + u, X + u))
        a('v_add_f32 v%d, v%d, v%d' % (vT1, X, X + 1))
        a('v_add_f32 v%d, v%d, v%d' % (vT2, X + 2, X + 3))
        for u in range(4):
            a('v_cvt_pk_bf16_f32 v%d, v%d, v%d' % (P2 + u, X + u, X + u))
        a('v_add_f32 v%d, v%d, v%d' % (vT1, vT1, vT2))
        a('v_fma_f32 v%d, v%d, v%d, v%d' % (vLs, vLs, vAL, vT1))
        for r in range(4):
            a('v_mul_f32 v%d, v%d, v%d' % (ACC + r, ACC + r, vAL))

    def vstep(base):
        for u in range(4):
            Bx = B0 if u % 2 == 0 else B1
            for r in range(4):
                a('v_and_b32 v%d, v%d, v%d' % (Bx + r, P2 + u, MK + r))
            a('v_mfma_f32_16x16x32_bf16 %s, %s, %s, %s' % (vr(ACC), vr(base + 4 * u), vr(Bx), vr(ACC)))

    def body(base, loads, waits):
        for s in range(4):
            if waits[s] is not None:
                a('s_waitcnt vmcnt(%d)' % min(waits[s], 63))
            b = base + 16 * s
            soff = sNXT if s < 2 else sNX2
            if s % 2 == 0:
                kstep(b)
                if loads:
                    ring_load(b, False, soff)
                softmax_step()
            else:
                vstep(b)
                if loads:
                    ring_load(b, True, soff)

    a.raw('.globl %s_kernel' % NAME)
    a.raw('.p2align 8')
    a.raw('.type %s_kernel,@function' % NAME)
    a.label('%s_kernel' % NAME)
    a('s_cmp_ge_u32 s2, 256')
    a('s_cbranch_scc1 L_END')
    if diag:
        a('s_memrealtime s[%d:%d]' % (sT00, sT00 + 1))
    a('s_load_dwordx16 s[8:23], s[0:1], 0')
    a('s_load_dwordx8 s[24:31], s[0:1], 64')
    a('v_and_b32 v%d, 63, v0' % vL)
    a('v_lshrrev_b32 v%d, 6, v0' % vT1)
    a('v_readfirstlane_b32 s%d, v%d' % (sW, vT1))
    a('s_lshr_b32 s%d, s2, 4' % sKVH)
    a('s_and_b32 s%d, s2, 15' % sJ)
    a('s_lshl_b32 s%d, s%d, 2' % (sWID, sJ))
    a('s_add_u32 s%d, s%d, s%d' % (sWID, sWID, sW))
    a('s_lshl_b32 s%d, s%d, 4' % (sBP, sJ))
    a('s_add_u32 s%d, s%d, s%d' % (sBP, sBP, sKVH))
    a('s_mov_b32 s%d, 0x%08x' % (sLOG2E, LOG2E))
    a('s_mov_b32 s%d, 0x%08x' % (sSCALE, SCALE))
    a('s_lshl_b32 s%d, s%d, 8' % (sCNT, sKVH))
    a('s_add_u32 s%d, s%d, 0x%x' % (sCNT, sCNT, C_BASE))
    a('v_lshlrev_b32 v%d, 4, v%d' % (vOFF, vL))
    a('v_mov_b32 v%d, 0' % vZ)
    a('v_lshlrev_b32 v%d, 1, v%d' % (vT1, vL))
    a('v_lshrrev_b32 v%d, 4, v0' % vT4)
    a('v_and_b32 v%d, 15, v0' % vT3)
    a('v_lshlrev_b32 v%d, 3, v%d' % (vT3, vT3))
    a('s_lshr_b32 s%d, s%d, 2' % (sT0, sJ))
    a('s_mul_i32 s%d, s%d, 144' % (sT0, sT0))
    a('v_add_u32 v%d, s%d, v%d' % (vT2, sT0, vT4))
    a('v_lshl_add_u32 v%d, v%d, 13, v%d' % (vA1, vT2, vT3))
    a('v_lshlrev_b32 v%d, 1, v%d' % (vT2, vT2))
    a('s_and_b32 s%d, s%d, 3' % (sT0, sKVH))
    a('s_mul_i32 s%d, s%d, 144' % (sT0, sT0))
    a('v_add_u32 v%d, s%d, v%d' % (vT4, sT0, vT4))
    a('v_mul_u32_u24 v%d, 9216, v%d' % (vA2, vT4))
    a('v_add_u32 v%d, v%d, v%d' % (vA2, vA2, vT3))
    a('v_lshlrev_b32 v%d, 1, v%d' % (vT4, vT4))
    a('s_lshl_b32 s%d, s%d, 9' % (sOFFS, sKVH))
    a('s_and_b32 s%d, s%d, 3' % (sT0, sJ))
    a('s_lshl_b32 s%d, s%d, 7' % (sT0, sT0))
    a('s_add_u32 s%d, s%d, s%d' % (sOFFS, sOFFS, sT0))
    a('s_lshl_b32 s%d, s%d, 13' % (sNXT, sWID))
    a('s_add_u32 s%d, s%d, 4096' % (sNX2, sNXT))
    a('s_waitcnt lgkmcnt(0)')
    mk_srd(sX, pX, 1152)
    mk_srd(sA, pWQ, 576 * 8192)
    for i in range(9):
        a('buffer_load_ushort v%d, v%d, %s, 0 offen offset:%d' % (XR + i, vT1, srd(sX), i * 128))
    for i in range(9):
        a('buffer_load_ushort v%d, v%d, %s, 0 offen offset:%d' % (XQH + i, vT2, srd(sX), i * 32))
    for i in range(9):
        a('buffer_load_ushort v%d, v%d, %s, 0 offen offset:%d' % (XFH + i, vT4, srd(sX), i * 32))
    mx = a.vm_mark()
    qmarks = []
    for i in range(9):
        a('buffer_load_dwordx2 v[%d:%d], v%d, %s, s%d offen%s' % (WREG + 2 * i, WREG + 2 * i + 1, vA1, srd(sA), sOFFS, WNT))
        qmarks.append(a.vm_mark())
        if i < 8:
            a('s_add_u32 s%d, s%d, %d' % (sOFFS, sOFFS, 16 * 8192))
    a('s_lshl_b32 s%d, s%d, 24' % (sT0, sKVH))
    mk_srd(sK, pK, 1 << 24, sT0)
    mk_srd(sV, pV, 1 << 24, sT0)
    mk_srd(sWS, pWS, WS_SIZE)
    mk_srd(sDBG, pDBG, 256)
    mk_srd(sOUT, pOUT, 1152)
    mk_srd(sWO, pWO, 4096 * 1152)
    mk_srd(sWD, pWD, 4608 * 1152)

    def bulk():
        ring_load(RING, False, sNXT)
        ring_load(RING + 16, True, sNXT)
        fm = []
        for u in range(3):
            a('s_add_u32 s%d, s%d, %d' % (sT0, sBP, 256 * u))
            a('s_lshr_b32 s%d, s%d, 2' % (sT0, sT0))
            a('s_sub_u32 s%d, s%d, 72' % (sT1, sT0))
            a('s_cmp_lt_u32 s%d, 72' % sT0)
            a('s_cselect_b32 s%d, s%d, s%d' % (sA, pWG, pWU))
            a('s_cselect_b32 s%d, s%d, s%d' % (sA + 1, pWG + 1, pWU + 1))
            a('s_cselect_b32 s%d, s%d, s%d' % (sT1, sT0, sT1))
            a('s_lshl_b32 s%d, s%d, 7' % (sOFFS, sT1))
            a('s_cmp_lt_u32 s%d, 144' % sT0)
            a('s_cselect_b32 s%d, 0x%x, 0' % (sA + 2, 576 * 9216))
            for i in range(9):
                r = WREG + 18 + 18 * u + 2 * i
                a('buffer_load_dwordx2 v[%d:%d], v%d, %s, s%d offen%s' % (r, r + 1, vA2, srd(sA), sOFFS, WNT))
                if i < 8:
                    a('s_add_u32 s%d, s%d, %d' % (sOFFS, sOFFS, 16 * 9216))
            fm.append(a.vm_mark())
        return fm

    def bulk2():
        a('v_mul_u32_u24 v%d, 911, v0' % vA1)
        a('v_lshrrev_b32 v%d, 16, v%d' % (vA1, vA1))
        a('v_mul_u32_u24 v%d, 72, v%d' % (vA2, vA1))
        a('v_sub_u32 v%d, v0, v%d' % (vA2, vA2))
        a('v_mul_u32_u24 v%d, %d, v%d' % (vT2, 6 * 1152, vA1))
        a('v_lshl_add_u32 v%d, v%d, 4, v%d' % (vT2, vA2, vT2))
        a('v_cmp_gt_u32 vcc, 216, v0')
        a('v_cndmask_b32 v%d, -16, v%d, vcc' % (vT2, vT2))
        a('s_mul_i32 s%d, s2, %d' % (sOFFS, 18 * 1152))
        a('s_add_u32 s%d, s%d, 3456' % (sT0, sOFFS))
        for i in range(6):
            a('buffer_load_dwordx4 %s, v%d, %s, s%d offen offset:%d%s' % (vr(WD + 4 * i), vT2, srd(sWD), sOFFS if i < 3 else sT0, (i % 3) * 1152, WNT))
        a('s_mul_i32 s%d, s%d, 5120' % (sT0, sW))
        a('s_mul_i32 s%d, s2, %d' % (sOFFS, 16 * 1152))
        a('s_add_u32 s%d, s%d, s%d' % (sOFFS, sOFFS, sT0))
        a('s_add_u32 s%d, s%d, %d' % (sT0, sT0, WOBUF))
        a('s_mov_b32 m0, s%d' % sT0)
        a('s_nop 0')
        for i in range(3):
            a.raw('    buffer_load_dwordx4 v%d, %s, s%d offen offset:%d%s lds' % (vOFF, srd(sWO), sOFFS, i * 1024, WNT))
            a.vm_issued += 1
        l = a.newlabel('L_WO')
        a('s_cmp_eq_u32 s%d, 3' % sW)
        a('s_cbranch_scc1 %s' % l)
        a('s_add_u32 s%d, s%d, 3072' % (sOFFS, sOFFS))
        a('s_add_u32 s%d, s%d, 3072' % (sT0, sT0))
        a('s_mov_b32 m0, s%d' % sT0)
        a('s_nop 0')
        for i in range(2):
            a.raw('    buffer_load_dwordx4 v%d, %s, s%d offen offset:%d%s lds' % (vOFF, srd(sWO), sOFFS, i * 1024, WNT))
        a.label(l)

    vm_a = a.vm_issued
    a('s_cmp_eq_u32 s%d, 0' % sW)
    a('s_cbranch_scc1 L_NOBULK')
    bulk()
    nbulk = a.vm_issued - vm_a
    a('s_cmp_lg_u32 s%d, 1' % sW)
    a('s_cbranch_scc1 L_NOBULK')
    for k in range(4):
        a('v_mov_b32 v%d, -1' % (B1 + k))
    a('s_lshl_b32 s%d, s2, 11' % sT0)
    a('s_add_u32 s%d, s%d, 0x%x' % (sT0, sT0, O_BASE))
    a('buffer_store_dwordx4 %s, v%d, %s, s%d offen sc1' % (vr(B1), vOFF, srd(sWS), sT0))
    a('buffer_store_dwordx4 %s, v%d, %s, s%d offen offset:1024 sc1' % (vr(B1), vOFF, srd(sWS), sT0))
    a('s_cmp_lg_u32 s%d, 0' % sJ)
    a('s_cbranch_scc1 L_NOCNT')
    a('s_mov_b64 exec, 1')
    a('buffer_store_dword v%d, v%d, %s, s%d offen sc1' % (vZ, vZ, srd(sWS), sCNT))
    a('s_mov_b64 exec, -1')
    a.label('L_NOCNT')
    a('s_cmp_ge_u32 s2, 144')
    a('s_cbranch_scc1 L_NOBULK')
    a('s_lshl_b32 s%d, s2, 12' % sT0)
    a('s_add_u32 s%d, s%d, 0x%x' % (sT0, sT0, Y_BASE))
    a('s_add_u32 s%d, s%d, 0x%x' % (sT1, sT0, Z_BASE - Y_BASE))
    for k in range(4):
        a('buffer_store_dwordx4 %s, v%d, %s, s%d offen offset:%d sc1' % (vr(B1), vOFF, srd(sWS), sT0, k * 1024))
    for k in range(4):
        a('buffer_store_dwordx4 %s, v%d, %s, s%d offen offset:%d sc1' % (vr(B1), vOFF, srd(sWS), sT1, k * 1024))
    a.label('L_NOBULK')
    a('v_and_b32 v%d, 15, v%d' % (vT4, vL))
    a('v_lshlrev_b32 v%d, 4, v%d' % (vT4, vT4))
    a('v_and_b32 v%d, 16, v%d' % (vT3, vL))
    a('v_lshrrev_b32 v%d, 1, v%d' % (vT3, vT3))
    a('v_add_u32 v%d, v%d, v%d' % (vT4, vT4, vT3))
    a('v_and_b32 v%d, 32, v%d' % (vT3, vL))
    a('v_lshrrev_b32 v%d, 3, v%d' % (vT3, vT3))
    a('v_add_u32 v%d, v%d, v%d' % (vT4, vT4, vT3))
    a('s_lshl_b32 s%d, s%d, 8' % (sT0, sW))
    a('v_add_u32 v%d, s%d, v%d' % (vT4, sT0, vT4))

    def ln_apply(H, L, n):
        for i in range(n):
            a('v_lshlrev_b32 v%d, 16, v%d' % (H + i, H + i))
            a('v_sub_f32 v%d, v%d, v%d' % (H + i, H + i, vT1))
            rnd_hi(H + i, H + i)
            a('v_mul_f32 v%d, v%d, v%d' % (L + i, H + i, vLs))
            a('v_fma_f32 v%d, -v%d, v%d, v%d' % (H + i, L + i, vM, H + i))
            a('v_fmac_f32 v%d, v%d, v%d' % (L + i, H + i, vLs))
            a('v_cvt_pk_bf16_f32 v%d, v%d, v%d' % (L + i, L + i, L + i))
            a('v_and_b32 v%d, 0xffff0000, v%d' % (H + i, L + i))
            a('v_and_b32 v%d, 0xffff, v%d' % (L + i, L + i))

    def two_way_wait(n0, n1):
        l0, l1 = a.newlabel('W0'), a.newlabel('W1')
        a('s_cmp_eq_u32 s%d, 0' % sW)
        a('s_cbranch_scc1 %s' % l0)
        a('s_waitcnt vmcnt(%d)' % n1)
        a('s_branch %s' % l1)
        a.label(l0)
        a('s_waitcnt vmcnt(%d)' % n0)
        a.label(l1)

    def unit_gemv(wb, H, L, ldsoff):
        for i in range(9):
            for c in range(4):
                a('v_dot2_f32_bf16 v%d, v%d, v%d, %s' % (AC + c, wb + 2 * i + (c >> 1), (H if c & 1 else L) + i, ('v%d' % (AC + c)) if i else '0'))
        for k in range(2):
            a('v_permlane32_swap_b32 v%d, v%d' % (AC + 2 * k, AC + 2 * k + 1))
        for k in range(2):
            a('v_add_f32 v%d, v%d, v%d' % (AC + 2 * k, AC + 2 * k, AC + 2 * k + 1))
        a('v_permlane16_swap_b32 v%d, v%d' % (AC, AC + 2))
        a('v_add_f32 v%d, v%d, v%d' % (AC, AC, AC + 2))
        a('ds_write_b32 v%d, v%d offset:%d' % (vT4, AC, ldsoff))

    two_way_wait(9, 9 + nbulk)
    for i in range(9):
        a('v_lshlrev_b32 v%d, 16, v%d' % (XR + i, XR + i))
    a('v_add_f32 v%d, v%d, v%d' % (vT1, XR, XR + 1))
    for i in range(2, 9):
        a('v_add_f32 v%d, v%d, v%d' % (vT1, vT1, XR + i))
    allreduce(vT1, 'v_add_f32', vAL)
    a('v_mul_f32 v%d, 0x%08x, v%d' % (vT1, f2u(1.0 / 576), vT1))
    a('v_sub_f32 v%d, v%d, v%d' % (XR, XR, vT1))
    a('v_mul_f32 v%d, v%d, v%d' % (vM, XR, XR))
    for i in range(1, 9):
        a('v_sub_f32 v%d, v%d, v%d' % (XR + i, XR + i, vT1))
        a('v_fmac_f32 v%d, v%d, v%d' % (vM, XR + i, XR + i))
    allreduce(vM, 'v_add_f32', vAL)
    a('v_mul_f32 v%d, 0x%08x, v%d' % (vM, f2u(1.0 / 576), vM))
    rnd_hi(vT1, vT1)
    rnd_hi(vM, vM)
    a('v_add_f32 v%d, 0x%08x, v%d' % (vM, f2u(1e-5), vM))
    rnd_hi(vM, vM)
    a('v_sqrt_f32 v%d, v%d' % (vM, vM))
    rnd_hi(vM, vM)
    a('v_rcp_f32 v%d, v%d' % (vLs, vM))
    ln_apply(XQH, XQL, 9)
    a.fence()
    two_way_wait(0, nbulk)
    unit_gemv(WREG, XQH, XQL, CBUF)
    a('s_waitcnt lgkmcnt(0)')
    a('s_barrier')
    a('s_cmp_lg_u32 s%d, 0' % sW)
    a('s_cbranch_scc1 L_QP')
    a('v_lshlrev_b32 v%d, 2, v%d' % (vT3, vL))
    for w in range(4):
        a('ds_read_b32 v%d, v%d offset:%d' % (AC + w, vT3, CBUF + w * 256))
    a('s_lshr_b32 s%d, s%d, 2' % (sT1, sJ))
    a('s_mul_i32 s%d, s%d, %d' % (sT1, sT1, PSTR))
    a('s_lshl_b32 s%d, s%d, 10' % (sT0, sKVH))
    a('s_add_u32 s%d, s%d, s%d' % (sT1, sT1, sT0))
    a('s_and_b32 s%d, s%d, 3' % (sT0, sJ))
    a('s_lshl_b32 s%d, s%d, 8' % (sT0, sT0))
    a('s_add_u32 s%d, s%d, s%d' % (sT1, sT1, sT0))
    a('s_waitcnt lgkmcnt(0)')
    a('v_add_f32 v%d, v%d, v%d' % (AC, AC, AC + 1))
    a('v_add_f32 v%d, v%d, v%d' % (AC + 2, AC + 2, AC + 3))
    a('v_add_f32 v%d, v%d, v%d' % (AC, AC, AC + 2))
    a('buffer_store_dword v%d, v%d, %s, s%d offen sc1' % (AC, vT3, srd(sWS), sT1))
    a('s_lshl_b32 s%d, s%d, 4' % (sT0, sKVH))
    a('v_mov_b32 v%d, 1' % vT3)
    a('s_waitcnt vmcnt(0)')
    a('s_mov_b64 exec, 1')
    a('buffer_atomic_add v%d, v%d, %s, s%d offen' % (vT3, vZ, srd(sDBG), sT0))
    a('s_mov_b64 exec, -1')
    stamp(1)
    bulk()
    a.fence()
    a.label('L_QP')
    ln_apply(XFH, XFL, 9)
    a.vm_issued = 0
    bulk2()
    n2 = a.vm_issued
    for u in range(3):
        a('s_waitcnt vmcnt(%d)' % (n2 + 9 * (2 - u)))
        unit_gemv(WREG + 18 + 18 * u, XFH, XFL, CBUF + 1024 * (u + 1))
    stamp(0, sT00)
    a('s_cmp_lg_u32 s%d, 0' % sW)
    a('s_cbranch_scc1 L_WQ')
    a('s_lshl_b32 s%d, s%d, 10' % (sT1, sKVH))
    a('s_lshl_b32 s%d, s%d, 4' % (sT0, sKVH))
    a('s_mov_b32 s%d, %d' % (sSPIN, spin))
    a.fence()
    a.label('L_QPOLL')
    a('buffer_load_dword v%d, v%d, %s, s%d offen sc1' % (vT3, vZ, srd(sDBG), sT0))
    a('s_waitcnt vmcnt(0)')
    a('v_readfirstlane_b32 s%d, v%d' % (sT2, vT3))
    a('s_sub_u32 s%d, s%d, 1' % (sSPIN, sSPIN))
    a('s_cbranch_scc1 L_QGO')
    a('s_cmp_ge_u32 s%d, 16' % sT2)
    a('s_cbranch_scc0 L_QPOLL')
    a.label('L_QGO')
    for r in range(4):
        a('buffer_load_dwordx4 %s, v%d, %s, s%d offen sc1' % (vr(WREG + 4 * r), vOFF, srd(sWS), sT1))
        if r < 3:
            a('s_add_u32 s%d, s%d, %d' % (sT1, sT1, PSTR))
    stamp(13)
    a('v_lshlrev_b32 v%d, 3, v%d' % (vT1, vL))
    a('s_waitcnt vmcnt(%d)' % (1 if diag else 0))
    for k in range(4):
        a('v_add_f32 v%d, v%d, v%d' % (WREG + k, WREG + k, WREG + 4 + k))
        a('v_add_f32 v%d, v%d, v%d' % (WREG + 8 + k, WREG + 8 + k, WREG + 12 + k))
        a('v_add_f32 v%d, v%d, v%d' % (WREG + k, WREG + k, WREG + 8 + k))
    a('v_cvt_pk_bf16_f32 v%d, v%d, v%d' % (WREG, WREG, WREG + 1))
    a('v_cvt_pk_bf16_f32 v%d, v%d, v%d' % (WREG + 1, WREG + 2, WREG + 3))
    a('ds_write_b64 v%d, v[%d:%d] offset:%d' % (vT1, WREG, WREG + 1, QBUF))
    a.fence()
    a.label('L_WQ')
    a('v_and_b32 v%d, 7, v%d' % (vT1, vL))
    a('v_lshrrev_b32 v%d, 1, v%d' % (vT2, vT1))
    a('v_and_b32 v%d, 1, v%d' % (vT3, vT1))
    a('v_lshlrev_b32 v%d, 4, v%d' % (vT3, vT3))
    a('v_mov_b32 v%d, 0xffff' % vT4)
    a('v_lshlrev_b32 v%d, v%d, v%d' % (vT4, vT3, vT4))
    for r in range(4):
        a('v_cmp_eq_u32 vcc, %d, v%d' % (r, vT2))
        a('v_cndmask_b32 v%d, 0, v%d, vcc' % (MK + r, vT4))
    for r in range(4):
        a('v_mov_b32 v%d, 0' % (ACC + r))
    a('v_mov_b32 v%d, 0xff800000' % vM)
    a('v_mov_b32 v%d, 0' % vLs)
    a('s_sub_u32 s%d, s%d, 64' % (sT0, sWID))
    a('v_mov_b32 v%d, s%d' % (vAT, sT0))
    a('v_and_b32 v%d, 15, v%d' % (vT1, vL))
    a('v_lshlrev_b32 v%d, 4, v%d' % (vT1, vT1))
    a('v_and_b32 v%d, 8, v%d' % (vT2, vL))
    a('v_lshl_add_u32 v%d, v%d, 5, v%d' % (vT1, vT2, vT1))
    a('v_xor_b32 v%d, 256, v%d' % (vT2, vT1))
    a('s_waitcnt lgkmcnt(0)')
    a('s_barrier')
    a('ds_read_b128 %s, v%d offset:%d' % (vr(qA), vT1, QBUF))
    a('ds_read_b128 %s, v%d offset:%d' % (vr(qB), vT2, QBUF))
    a('s_cmp_lg_u32 s%d, 1' % sW)
    a('s_cbranch_scc1 L_NOPUB')
    a('v_lshlrev_b32 v%d, 2, v%d' % (vT3, vL))
    for u in range(3):
        for w in range(4):
            a('ds_read_b32 v%d, v%d offset:%d' % (WREG + 4 * u + w, vT3, CBUF + 1024 * (u + 1) + w * 256))
    a('s_and_b32 s%d, s%d, 3' % (sT1, sKVH))
    a('s_mul_i32 s%d, s%d, %d' % (sT1, sT1, PSTR))
    a('s_lshr_b32 s%d, s%d, 2' % (sT0, sBP))
    a('s_lshl_b32 s%d, s%d, 8' % (sT0, sT0))
    a('s_add_u32 s%d, s%d, s%d' % (sT1, sT1, sT0))
    a('s_add_u32 s%d, s%d, %d' % (sT1, sT1, 4096 * 4))
    a('s_waitcnt lgkmcnt(0)')
    for u in range(3):
        r = WREG + 4 * u
        a('v_add_f32 v%d, v%d, v%d' % (r, r, r + 1))
        a('v_add_f32 v%d, v%d, v%d' % (r + 2, r + 2, r + 3))
        a('v_add_f32 v%d, v%d, v%d' % (r, r, r + 2))
        if u == 2:
            a('s_cmp_ge_u32 s%d, 64' % sBP)
            a('s_cbranch_scc1 L_NOPUB')
        a('buffer_store_dword v%d, v%d, %s, s%d offen sc1' % (r, vT3, srd(sWS), sT1))
        a('s_add_u32 s%d, s%d, %d' % (sT1, sT1, 64 * 256))
    a.label('L_NOPUB')
    a('s_waitcnt lgkmcnt(0)')
    stamp(2)

    def half(soff, w0, w1, loads=True):
        if w0 is not None:
            a('s_waitcnt vmcnt(%d)' % w0)
        kstep(RING)
        if loads:
            ring_load(RING, False, soff)
        softmax_step()
        a('s_waitcnt vmcnt(%d)' % w1)
        vstep(RING + 16)
        if loads:
            ring_load(RING + 16, True, soff)
    a('s_mov_b32 s%d, 0' % sIT)
    a.fence()
    a.raw('.p2align 6')
    a.label('L_LOOP')
    a('s_add_u32 s%d, s%d, 4096' % (sNX2, sNXT))
    half(sNX2, 4, 4)
    a('s_waitcnt vmcnt(4)')
    a('s_cmp_gt_u32 s%d, %d' % (sIT, NS - 1))
    a('s_cbranch_scc1 L_DYN')
    a('s_branch L_SPECIAL')
    a.label('L_DYN')
    a('v_readfirstlane_b32 s%d, v%d' % (sT0, vAT))
    a('s_add_u32 s%d, s%d, %d' % (sT0, sT0, NS * 64))
    a('s_cmp_ge_u32 s%d, %d' % (sT0, NCH))
    a('s_cbranch_scc1 L_LAST')
    a('v_mov_b32 v%d, 1' % vAT)
    a('s_mov_b64 exec, 1')
    a('buffer_atomic_add v%d, v%d, %s, s%d offen sc0' % (vAT, vZ, srd(sWS), sCNT))
    a('s_mov_b64 exec, -1')
    a.label('L_GOTID')
    a('s_lshl_b32 s%d, s%d, 13' % (sNXT, sT0))
    half(sNXT, None, 5)
    if diag:
        a('s_memrealtime s[%d:%d]' % (sTS, sTS + 1))
        a('s_waitcnt lgkmcnt(0)')
        a('v_mov_b32 v%d, s%d' % (vS1, sTS))
        a('v_mov_b32 v%d, s%d' % (vS2, sTS + 1))
        a('s_lshl_b32 s%d, s2, 2' % sTS)
        a('s_add_u32 s%d, s%d, s%d' % (sTS, sTS, sW))
        a('s_lshl_b32 s%d, s%d, 6' % (sTS, sTS))
        a('s_add_u32 s%d, s%d, s%d' % (sTS, sTS, sIT))
        a('s_lshl_b32 s%d, s%d, 3' % (sTS, sTS))
        a('s_add_u32 s%d, s%d, 0x%x' % (sTS, sTS, 0x340000))
        a('s_mov_b64 exec, 1')
        a('buffer_store_dwordx2 v[%d:%d], v%d, %s, s%d offen' % (vS1, vS2, vZ, srd(sWS), sTS))
        a('s_mov_b64 exec, -1')
    a('s_add_u32 s%d, s%d, 1' % (sIT, sIT))
    a.fence()
    a('s_branch L_LOOP')
    a.label('L_SPECIAL')
    a('s_cmp_eq_u32 s%d, %d' % (sIT, NS - 1))
    a('s_cbranch_scc1 L_SP_FFN')
    a('s_cmp_eq_u32 s%d, %d' % (sIT, NS - 2))
    a('s_cbranch_scc1 L_SP_VER')
    a('s_cmp_lg_u32 s%d, %d' % (sIT, NS - 3))
    a('s_cbranch_scc1 L_SP_1')
    a('buffer_load_dword v%d, v%d, %s, 0 offen offset:%d sc1' % (vCLR, vZ, srd(sDBG), G_OFF))
    a.label('L_SP_1')
    a('s_cmp_lg_u32 s%d, 1' % sIT)
    a('s_cbranch_scc1 L_SP_ST')
    a('s_cmp_lg_u32 s%d, 1' % sW)
    a('s_cbranch_scc1 L_SP_ST')
    a('v_mov_b32 v%d, 1' % vT3)
    a('s_mov_b64 exec, 1')
    a('buffer_atomic_add v%d, v%d, %s, 0 offen offset:%d' % (vT3, vZ, srd(sDBG), G_OFF))
    a('s_mov_b64 exec, -1')
    a.label('L_SP_ST')
    a('s_add_u32 s%d, s%d, 1' % (sT0, sIT))
    a('s_lshl_b32 s%d, s%d, 6' % (sT0, sT0))
    a('s_add_u32 s%d, s%d, s%d' % (sT0, sT0, sWID))
    a('s_waitcnt vmcnt(4)')
    a('s_lshl_b32 s%d, s%d, 13' % (sNXT, sT0))
    a.fence()
    half(sNXT, None, 4)
    a('s_add_u32 s%d, s%d, 1' % (sIT, sIT))
    a.fence()
    a('s_branch L_LOOP')
    a.label('L_SP_VER')
    a('v_readfirstlane_b32 s%d, v%d' % (sT2, vCLR))
    a('s_mov_b32 s%d, %d' % (sSPIN, spin))
    a('s_cmp_ge_u32 s%d, 256' % sT2)
    a('s_cbranch_scc1 L_SP_OK')
    a.label('L_GPOLL')
    a('buffer_load_dword v%d, v%d, %s, 0 offen offset:%d sc1' % (vCLR, vZ, srd(sDBG), G_OFF))
    a('s_waitcnt vmcnt(0)')
    a('v_readfirstlane_b32 s%d, v%d' % (sT2, vCLR))
    a('s_sub_u32 s%d, s%d, 1' % (sSPIN, sSPIN))
    a('s_cbranch_scc1 L_SP_OK')
    a('s_cmp_ge_u32 s%d, 256' % sT2)
    a('s_cbranch_scc0 L_GPOLL')
    a.label('L_SP_OK')
    a('s_mul_i32 s%d, s2, 72' % sT0)
    a('s_add_u32 s%d, s%d, %d' % (sT0, sT0, 4096 * 4))
    a('v_lshlrev_b32 v%d, 2, v%d' % (vT1, vL))
    for r in range(4):
        a('buffer_load_dword v%d, v%d, %s, s%d offen sc1' % (GP + r, vT1, srd(sWS), sT0))
        a('s_add_u32 s%d, s%d, %d' % (sT1, sT0, 4608 * 4))
        a('buffer_load_dword v%d, v%d, %s, s%d offen sc1' % (GP + 4 + r, vT1, srd(sWS), sT1))
        if r < 3:
            a('s_add_u32 s%d, s%d, %d' % (sT0, sT0, PSTR))
    a.fence()
    a('s_branch L_DYN')
    a.label('L_SP_FFN')
    for b in (GP, GP + 4):
        a('v_add_f32 v%d, v%d, v%d' % (b, b, b + 1))
        a('v_add_f32 v%d, v%d, v%d' % (b + 2, b + 2, b + 3))
        a('v_add_f32 v%d, v%d, v%d' % (b, b, b + 2))
        rnd_hi(b, b)
    a('v_mul_f32 v%d, s%d, v%d' % (GP + 1, sLOG2E, GP))
    a('v_exp_f32 v%d, -v%d' % (GP + 1, GP + 1))
    a('v_add_f32 v%d, 1.0, v%d' % (GP + 1, GP + 1))
    a('v_rcp_f32 v%d, v%d' % (GP + 1, GP + 1))
    a('v_mul_f32 v%d, v%d, v%d' % (GP + 1, GP + 1, GP))
    rnd_hi(GP + 1, GP + 1)
    a('v_mul_f32 v%d, v%d, v%d' % (GP + 1, GP + 1, GP + 4))
    rnd_hi(GP + 1, GP + 1)
    a('v_mul_u32_u24 v%d, 24, v%d' % (vT1, vA1))
    HH, HL = WREG + 40, WREG + 48
    for i in range(6):
        a('v_add_u32 v%d, %d, v%d' % (vT2, 4 * i, vT1))
        a('ds_bpermute_b32 v%d, v%d, v%d' % (HH + i, vT2, GP + 1))
    a('v_mul_u32_u24 v%d, 2304, v%d' % (vT1, vA1))
    a('v_lshl_add_u32 v%d, v%d, 5, v%d' % (vT1, vA2, vT1))
    a('s_waitcnt lgkmcnt(0)')
    for i in range(6):
        a('v_lshrrev_b32 v%d, 16, v%d' % (HL + i, HH + i))
    for i in range(6):
        for c in range(8):
            a('v_dot2_f32_bf16 v%d, v%d, v%d, %s' % (B0 + c, WD + 4 * i + (c >> 1), (HH if c & 1 else HL) + i, ('v%d' % (B0 + c)) if i else '0'))
    a('ds_write_b128 v%d, %s offset:%d' % (vT1, vr(B0), ZBUF))
    a('ds_write_b128 v%d, %s offset:%d' % (vT1, vr(B0 + 4), ZBUF + 16))
    a.fence()
    a('s_branch L_DYN')
    a.label('L_LAST')
    half(None, None, 0, loads=False)
    a.fence()
    stamp(3)
    for sw in ('v_permlane16_swap_b32', 'v_permlane32_swap_b32'):
        a('v_mov_b32 v%d, v%d' % (vT2, vLs))
        a('%s v%d, v%d' % (sw, vLs, vT2))
        a('v_add_f32 v%d, v%d, v%d' % (vLs, vLs, vT2))
    a('v_lshrrev_b32 v%d, 4, v%d' % (vT1, vL))
    a('v_lshlrev_b32 v%d, 7, v%d' % (vT1, vT1))
    a('v_and_b32 v%d, 7, v%d' % (vT2, vL))
    a('v_lshl_add_u32 v%d, v%d, 2, v%d' % (vT1, vT2, vT1))
    a('v_and_b32 v%d, 8, v%d' % (vT2, vL))
    a('v_lshl_add_u32 v%d, v%d, 6, v%d' % (vT1, vT2, vT1))
    a('s_lshl_b32 s%d, s%d, 10' % (sT0, sW))
    a('v_add_u32 v%d, s%d, v%d' % (vT1, sT0, vT1))
    for r in range(4):
        a('ds_write_b32 v%d, v%d offset:%d' % (vT1, ACC + r, CBUF + r * 32))
    a('s_lshl_b32 s%d, s%d, 4' % (sT0, sW))
    a('v_add_u32 v%d, s%d, v%d' % (vT2, sT0, vT2))
    a('s_mov_b64 exec, 0x101')
    a('ds_write_b64 v%d, v[%d:%d] offset:%d' % (vT2, vM, vLs, MLBUF))
    a('s_mov_b64 exec, -1')
    a('s_waitcnt lgkmcnt(0)')
    a('s_barrier')
    a('s_cmp_lg_u32 s%d, 0' % sW)
    a('s_cbranch_scc1 L_T2')
    OW = RING
    MLW = RING + 16
    a('v_lshlrev_b32 v%d, 4, v%d' % (vT1, vL))
    for w in range(4):
        a('ds_read_b128 %s, v%d offset:%d' % (vr(OW + 4 * w), vT1, CBUF + w * 1024))
    a('v_lshrrev_b32 v%d, 5, v%d' % (vT2, vL))
    a('v_lshlrev_b32 v%d, 3, v%d' % (vT2, vT2))
    for w in range(4):
        a('ds_read_b64 v[%d:%d], v%d offset:%d' % (MLW + 2 * w, MLW + 2 * w + 1, vT2, MLBUF + w * 16))
    a('v_lshrrev_b32 v%d, 2, v%d' % (vT3, vL))
    a('v_lshlrev_b32 v%d, 11, v%d' % (vT3, vT3))
    a('v_and_b32 v%d, 3, v%d' % (vT4, vL))
    a('v_lshl_add_u32 v%d, v%d, 4, v%d' % (vT4, vT4, vT3))
    a('s_lshl_b32 s%d, s%d, 15' % (sT0, sKVH))
    a('s_add_u32 s%d, s%d, 0x%x' % (sT0, sT0, O_BASE))
    a('s_lshl_b32 s%d, s%d, 6' % (sT1, sJ))
    a('s_add_u32 s%d, s%d, s%d' % (sT1, sT1, sT0))
    a('s_lshl_b32 s%d, s%d, 4' % (sT2, sJ))
    a('s_add_u32 s%d, s%d, s%d' % (sT2, sT2, sT0))
    a('s_waitcnt lgkmcnt(0)')
    a('v_max3_f32 v%d, v%d, v%d, v%d' % (B0, MLW, MLW + 2, MLW + 4))
    a('v_max_f32 v%d, v%d, v%d' % (B0, B0, MLW + 6))
    for w in range(4):
        a('v_sub_f32 v%d, v%d, v%d' % (MLW + 2 * w, MLW + 2 * w, B0))
        a('v_mul_f32 v%d, s%d, v%d' % (MLW + 2 * w, sLOG2E, MLW + 2 * w))
        a('v_exp_f32 v%d, v%d' % (MLW + 2 * w, MLW + 2 * w))
    a('v_mul_f32 v%d, v%d, v%d' % (B0 + 1, MLW, MLW + 1))
    for w in range(1, 4):
        a('v_fmac_f32 v%d, v%d, v%d' % (B0 + 1, MLW + 2 * w, MLW + 2 * w + 1))
    for k in range(4):
        a('v_mul_f32 v%d, v%d, v%d' % (B1 + k, OW + k, MLW))
        for w in range(1, 4):
            a('v_fmac_f32 v%d, v%d, v%d' % (B1 + k, OW + 4 * w + k, MLW + 2 * w))
    for k in range(4):
        a('v_min_u32 v%d, -2, v%d' % (B1 + k, B1 + k))
    a('v_min_u32 v%d, -2, v%d' % (B0, B0))
    a('v_min_u32 v%d, -2, v%d' % (B0 + 1, B0 + 1))
    a('buffer_store_dwordx4 %s, v%d, %s, s%d offen sc1' % (vr(B1), vT4, srd(sWS), sT1))
    a('s_mov_b32 exec_lo, 0x11111111')
    a('s_mov_b32 exec_hi, 0x11111111')
    a('buffer_store_dwordx2 v[%d:%d], v%d, %s, s%d offen offset:1024 sc1' % (B0, B0 + 1, vT3, srd(sWS), sT2))
    a('s_mov_b64 exec, -1')
    a.fence()
    a('s_branch L_HOP1')
    a.label('L_T2')
    a('v_subrev_u32 v%d, 112, v0' % vT1)
    a('v_lshlrev_b32 v%d, 4, v%d' % (vT2, vT1))
    a('v_cmp_gt_u32 vcc, 144, v%d' % vT1)
    a('s_and_saveexec_b64 s[%d:%d], vcc' % (sM0, sM0 + 1))
    for g in range(3):
        a('ds_read_b128 %s, v%d offset:%d' % (vr(RING + 4 * g), vT2, ZBUF + g * 2304))
    a('v_lshlrev_b32 v%d, 12, v%d' % (vT1, vT1))
    a('s_lshl_b32 s%d, s2, 4' % sT0)
    a('s_add_u32 s%d, s%d, 0x%x' % (sT0, sT0, Z_BASE))
    a('s_waitcnt lgkmcnt(0)')
    for k in range(4):
        a('v_add_f32 v%d, v%d, v%d' % (RING + k, RING + k, RING + 4 + k))
        a('v_add_f32 v%d, v%d, v%d' % (RING + k, RING + k, RING + 8 + k))
        a('v_min_u32 v%d, -2, v%d' % (RING + k, RING + k))
    a('buffer_store_dwordx4 %s, v%d, %s, s%d offen sc1' % (vr(RING), vT1, srd(sWS), sT0))
    a('s_mov_b64 exec, -1')
    a.fence()
    a('s_cmp_ge_u32 s%d, 2' % sW)
    a('s_cbranch_scc1 L_HOP2')
    a.label('L_HOP1')
    a('v_lshlrev_b32 v%d, 4, v0' % vT1)
    for i in range(16):
        a('ds_read_b128 %s, v%d offset:%d' % (vr(WREG + 4 * i), vT1, WOBUF + i * 1152))
    O4 = RING + 32
    ML = RING + 36
    a('v_lshlrev_b32 v%d, 4, v%d' % (vT1, vL))
    a('v_lshrrev_b32 v%d, 2, v%d' % (vT2, vL))
    a('v_lshlrev_b32 v%d, 4, v%d' % (vT2, vT2))
    a('s_lshl_b32 s%d, s2, 11' % sINB)
    a('s_add_u32 s%d, s%d, 0x%x' % (sINB, sINB, O_BASE))
    a('buffer_load_dwordx4 %s, v%d, %s, s%d offen sc1' % (vr(O4), vT1, srd(sWS), sINB))
    a('buffer_load_dwordx2 v[%d:%d], v%d, %s, s%d offen offset:1024 sc1' % (ML, ML + 1, vT2, srd(sWS), sINB))
    a('s_mov_b32 s%d, %d' % (sSPIN, spin))
    a('s_mov_b32 s%d, 0x05040100' % sT0)
    a('s_mov_b32 s%d, 0x07060302' % sT1)
    a('s_waitcnt lgkmcnt(0)')
    for p in range(8):
        for d in range(4):
            r0, r1 = WREG + 8 * p + d, WREG + 8 * p + 4 + d
            a('v_perm_b32 v%d, v%d, v%d, s%d' % (vT3, r1, r0, sT0))
            a('v_perm_b32 v%d, v%d, v%d, s%d' % (r1, r1, r0, sT1))
            a('v_mov_b32 v%d, v%d' % (r0, vT3))
    a.fence()
    a('s_branch L_H1CHK')
    a.label('L_H1POLL')
    a('buffer_load_dwordx4 %s, v%d, %s, s%d offen sc1' % (vr(O4), vT1, srd(sWS), sINB))
    a('buffer_load_dwordx2 v[%d:%d], v%d, %s, s%d offen offset:1024 sc1' % (ML, ML + 1, vT2, srd(sWS), sINB))
    a.label('L_H1CHK')
    a('s_waitcnt vmcnt(0)')
    a('v_max3_u32 v%d, v%d, v%d, v%d' % (vT3, O4, O4 + 1, O4 + 2))
    a('v_max3_u32 v%d, v%d, v%d, v%d' % (vT4, O4 + 3, ML, ML + 1))
    a('v_max_u32 v%d, v%d, v%d' % (vT3, vT3, vT4))
    a('v_cmp_eq_u32 vcc, -1, v%d' % vT3)
    a('s_sub_u32 s%d, s%d, 1' % (sSPIN, sSPIN))
    a('s_cbranch_scc1 L_H1GO')
    a('s_cbranch_vccnz L_H1POLL')
    a.label('L_H1GO')
    stamp(4)
    a('v_mov_b32 v%d, v%d' % (vT3, ML))
    allreduce(vT3, 'v_max_f32', vT4, steps=(4, 8))
    a('v_sub_f32 v%d, v%d, v%d' % (ML, ML, vT3))
    a('v_mul_f32 v%d, s%d, v%d' % (ML, sLOG2E, ML))
    a('v_exp_f32 v%d, v%d' % (ML, ML))
    a('v_mul_f32 v%d, v%d, v%d' % (ML + 1, ML + 1, ML))
    for k in range(4):
        a('v_mul_f32 v%d, v%d, v%d' % (O4 + k, O4 + k, ML))
    regs5 = [O4, O4 + 1, O4 + 2, O4 + 3, ML + 1]
    tmps5 = [B0, B0 + 1, B0 + 2, B0 + 3, B1]
    for s in (4, 8):
        for rg in regs5:
            a('v_add_f32_dpp v%d, v%d, v%d row_ror:%d %s' % (rg, rg, rg, s, DPPM))
    for sw in ('v_permlane16_swap_b32', 'v_permlane32_swap_b32'):
        for rg, t in zip(regs5, tmps5):
            a('v_mov_b32 v%d, v%d' % (t, rg))
        for rg, t in zip(regs5, tmps5):
            a('%s v%d, v%d' % (sw, rg, t))
        for rg, t in zip(regs5, tmps5):
            a('v_add_f32 v%d, v%d, v%d' % (rg, rg, t))
    a('v_rcp_f32 v%d, v%d' % (vT3, ML + 1))
    for k in range(4):
        a('v_mul_f32 v%d, v%d, v%d' % (B0 + k, O4 + k, vT3))
        a('v_fma_f32 v%d, -v%d, v%d, v%d' % (O4 + k, B0 + k, ML + 1, O4 + k))
        a('v_fmac_f32 v%d, v%d, v%d' % (B0 + k, O4 + k, vT3))
    a('v_cvt_pk_bf16_f32 v%d, v%d, v%d' % (B1, B0, B0 + 1))
    a('v_cvt_pk_bf16_f32 v%d, v%d, v%d' % (B1 + 1, B0 + 2, B0 + 3))
    for c in range(4):
        for hlf in range(2):
            a('v_readlane_b32 s%d, v%d, %d' % (sP + 2 * c + hlf, B1 + hlf, c))
    YA = RING + 40
    for p in range(8):
        for col in range(8):
            src = WREG + 8 * p + (4 if col & 1 else 0) + (col >> 1)
            a('v_dot2_f32_bf16 v%d, v%d, s%d, %s' % (YA + col, src, sP + p, ('v%d' % (YA + col)) if p else '0'))
    a('v_lshlrev_b32 v%d, 13, v0' % vT1)
    a('s_lshl_b32 s%d, s2, 4' % sT0)
    a('s_add_u32 s%d, s%d, 0x%x' % (sT0, sT0, Y_BASE))
    a('s_add_u32 s%d, s%d, 4096' % (sT1, sT0))
    for col in range(8):
        a('v_min_u32 v%d, -2, v%d' % (YA + col, YA + col))
    a('v_cmp_gt_u32 vcc, 72, v0')
    a('s_and_saveexec_b64 s[%d:%d], vcc' % (sM0, sM0 + 1))
    a('buffer_store_dwordx4 %s, v%d, %s, s%d offen sc1' % (vr(YA), vT1, srd(sWS), sT0))
    a('buffer_store_dwordx4 %s, v%d, %s, s%d offen sc1' % (vr(YA + 4), vT1, srd(sWS), sT1))
    a('s_mov_b64 exec, -1')
    a.fence()
    a.label('L_HOP2')
    a('s_cmp_ge_u32 s2, 144')
    a('s_cbranch_scc1 L_END')
    YV = RING
    ZV = RING + 4
    a('v_lshlrev_b32 v%d, 4, v0' % vT1)
    a('s_lshl_b32 s%d, s2, 12' % sT0)
    a('s_add_u32 s%d, s%d, 0x%x' % (sT0, sT0, Y_BASE))
    a('s_add_u32 s%d, s%d, 0x%x' % (sT1, sT0, Z_BASE - Y_BASE))
    a('s_lshl_b32 s%d, s2, 3' % sT2)
    a('v_lshlrev_b32 v%d, 1, v%d' % (vA1, vL))
    a('buffer_load_ushort v%d, v%d, %s, s%d offen' % (vXO, vA1, srd(sX), sT2))
    a('s_mov_b32 s%d, %d' % (sSPIN, spin))
    a.fence()
    a.label('L_H2POLL')
    a('buffer_load_dwordx4 %s, v%d, %s, s%d offen sc1' % (vr(YV), vT1, srd(sWS), sT0))
    a('buffer_load_dwordx4 %s, v%d, %s, s%d offen sc1' % (vr(ZV), vT1, srd(sWS), sT1))
    a('s_waitcnt vmcnt(0)')
    a('v_max3_u32 v%d, v%d, v%d, v%d' % (vT3, YV, YV + 1, YV + 2))
    a('v_max3_u32 v%d, v%d, v%d, v%d' % (vT4, YV + 3, ZV, ZV + 1))
    a('v_max3_u32 v%d, v%d, v%d, v%d' % (vT3, vT3, ZV + 2, ZV + 3))
    a('v_max_u32 v%d, v%d, v%d' % (vT3, vT3, vT4))
    a('v_cmp_eq_u32 vcc, -1, v%d' % vT3)
    a('s_sub_u32 s%d, s%d, 1' % (sSPIN, sSPIN))
    a('s_cbranch_scc1 L_H2GO')
    a('s_cbranch_vccnz L_H2POLL')
    a.label('L_H2GO')
    stamp(5)
    for k in range(4):
        a('v_permlane32_swap_b32 v%d, v%d' % (YV + k, ZV + k))
    for k in range(4):
        a('v_add_f32 v%d, v%d, v%d' % (YV + k, YV + k, ZV + k))
    a('v_permlane16_swap_b32 v%d, v%d' % (YV, YV + 1))
    a('v_permlane16_swap_b32 v%d, v%d' % (YV + 2, YV + 3))
    a('v_add_f32 v%d, v%d, v%d' % (ZV, YV, YV + 1))
    a('v_add_f32 v%d, v%d, v%d' % (ZV + 1, YV + 2, YV + 3))
    for s in (8, 4, 2, 1):
        for k in range(2):
            a('v_add_f32_dpp v%d, v%d, v%d row_ror:%d %s' % (ZV + k, ZV + k, ZV + k, s, DPPM))
    a('v_lshrrev_b32 v%d, 1, v%d' % (vT1, vL))
    a('s_lshl_b32 s%d, s%d, 5' % (sT0, sW))
    a('v_add_u32 v%d, s%d, v%d' % (vT1, sT0, vT1))
    a('s_mov_b32 exec_lo, 0x00010001')
    a('s_mov_b32 exec_hi, 0x00010001')
    a('ds_write_b64 v%d, v[%d:%d] offset:%d' % (vT1, ZV, ZV + 1, RBUF))
    a('s_mov_b64 exec, -1')
    a('s_waitcnt lgkmcnt(0)')
    a('s_barrier')
    a('s_cmp_lg_u32 s%d, 0' % sW)
    a('s_cbranch_scc1 L_END')
    a('v_and_b32 v%d, 1, v%d' % (vT1, vL))
    a('v_lshlrev_b32 v%d, 3, v%d' % (vT1, vT1))
    a('v_and_b32 v%d, 2, v%d' % (vT2, vL))
    a('v_lshl_add_u32 v%d, v%d, 1, v%d' % (vT1, vT2, vT1))
    for w in range(4):
        a('ds_read_b32 v%d, v%d offset:%d' % (YV + w, vT1, RBUF + w * 32))
        a('ds_read_b32 v%d, v%d offset:%d' % (ZV + w, vT1, RBUF + w * 32 + 16))
    a('s_waitcnt lgkmcnt(0)')
    for base in (YV, ZV):
        a('v_add_f32 v%d, v%d, v%d' % (base, base, base + 1))
        a('v_add_f32 v%d, v%d, v%d' % (base + 2, base + 2, base + 3))
        a('v_add_f32 v%d, v%d, v%d' % (base, base, base + 2))
        rnd_hi(base, base)
    a('v_mul_f32 v%d, s%d, v%d' % (vT1, sLOG2E, ZV))
    a('v_exp_f32 v%d, -v%d' % (vT1, vT1))
    a('v_add_f32 v%d, 1.0, v%d' % (vT1, vT1))
    a('v_rcp_f32 v%d, v%d' % (vT1, vT1))
    a('v_mul_f32 v%d, v%d, v%d' % (vT1, vT1, ZV))
    rnd_hi(vT1, vT1)
    a('v_mul_f32 v%d, v%d, v%d' % (vT1, vT1, YV))
    rnd_hi(vT1, vT1)
    a('v_lshlrev_b32 v%d, 16, v%d' % (vXO, vXO))
    a('v_add_f32 v%d, v%d, v%d' % (vT1, vT1, vXO))
    a('v_cvt_pk_bf16_f32 v%d, v%d, v%d' % (vT1, vT1, vT1))
    a('s_mov_b64 exec, 15')
    a('buffer_store_short v%d, v%d, %s, s%d offen' % (vT1, vA1, srd(sOUT), sT2))
    a('s_mov_b64 exec, -1')
    stamp(6)
    a.label('L_END')
    a('s_endpgm')
    a.raw('.section .rodata,"a"')
    for nm, nv, ns in (('%s_kernel' % NAME, NVGPR, 102),):
        a.raw('.p2align 6')
        a.raw('.amdhsa_kernel %s' % nm)
        a.raw('  .amdhsa_next_free_vgpr %d' % nv)
        a.raw('  .amdhsa_next_free_sgpr %d' % ns)
        a.raw('  .amdhsa_accum_offset %d' % ((nv + 3) // 4 * 4))
        a.raw('  .amdhsa_group_segment_fixed_size 0')
        a.raw('  .amdhsa_kernarg_size 96')
        a.raw('  .amdhsa_user_sgpr_count 2')
        a.raw('  .amdhsa_user_sgpr_kernarg_segment_ptr 1')
        a.raw('  .amdhsa_system_sgpr_workgroup_id_x 1')
        a.raw('  .amdhsa_float_denorm_mode_32 3')
        a.raw('.end_amdhsa_kernel')
    return a.text()


if __name__ == '__main__':
    ap = argparse.ArgumentParser()
    ap.add_argument('-o', default='cdna_kernels/%s.s' % NAME)
    ap.add_argument('--NS', type=int, default=6)
    ap.add_argument('--diag', action='store_true')
    ap.add_argument('--nownt', action='store_true')
    ap.add_argument('--R2', action='store_true')
    args = ap.parse_args()
    open(args.o, 'w').write(gen(NS=args.NS, diag=args.diag, wnt=not args.nownt, R2=args.R2))
```

```python
import sys, argparse, struct
sys.path.insert(0, 'dev')
from asmlib import Asm

NAME = 'recurrent_scan__gqa_block_cached__swiglu_ffn__decode'

def f2u(x):
    return struct.unpack('<I', struct.pack('<f', x))[0]

LOG2E = f2u(1.4426950408889634)
SCALE = f2u(128 ** -0.5)
DPPM = 'row_mask:0xf bank_mask:0xf'

P_BASE = 0
PSTR = 13312 * 4
C_BASE = 0x38000
O_BASE = 0x40000
Y_BASE = 0x100000
Z_BASE = 0x200000
TS_BASE = 0x300000
WS_SIZE = 0x400000
HBUF, ZBUF, CBUF, MLBUF, RBUF, QBUF, WOBUF, LDS_SIZE = 0, 256, 9472, 13568, 13696, 13824, 17920, 37888
NCH = 2048


class Ctx:
    pass


def gen(NS=6, diag=False, wnt=True, spin=1 << 16, R2=False, cmap=0):
    a = Asm()
    NT = ' nt'
    WNT = ' nt' if wnt else ''

    def srd(n):
        return 's[%d:%d]' % (n, n + 3)

    def vr(n, k=4):
        return 'v[%d:%d]' % (n, n + k - 1)

    def rnd_hi(dst, src):
        a('v_cvt_pk_bf16_f32 v%d, v%d, v%d' % (dst, src, src))
        a('v_and_b32 v%d, 0xffff0000, v%d' % (dst, dst))

    def allreduce(reg, op, tmp, steps=(8, 4, 2, 1)):
        for s in steps:
            a('%s_dpp v%d, v%d, v%d row_ror:%d %s' % (op, reg, reg, reg, s, DPPM))
        for sw in ('v_permlane16_swap_b32', 'v_permlane32_swap_b32'):
            a('v_mov_b32 v%d, v%d' % (tmp, reg))
            a('%s v%d, v%d' % (sw, reg, tmp))
            a('%s v%d, v%d, v%d' % (op, reg, reg, tmp))

    def mk_srd(s, p, nrec, off_sgpr=None):
        if off_sgpr is None:
            a('s_mov_b32 s%d, s%d' % (s, p))
            a('s_mov_b32 s%d, s%d' % (s + 1, p + 1))
        else:
            a('s_add_u32 s%d, s%d, s%d' % (s, p, off_sgpr))
            a('s_addc_u32 s%d, s%d, 0' % (s + 1, p + 1))
        if nrec is not None:
            a('s_mov_b32 s%d, 0x%x' % (s + 2, nrec))
        a('s_mov_b32 s%d, 0x00020000' % (s + 3))

    pX, pK, pV, pWQ, pWO, pBX, pWG, pWU, pWD, pOUT, pDBG, pWS = [8 + 2 * i for i in range(12)]

    a.raw('; @launch grid=(256,1,1) block=(256,1,1) lds=%d' % LDS_SIZE)
    a.raw('.amdgcn_target "amdgcn-amd-amdhsa--gfx950"')
    a.raw('.text')
    vT, vL, vOFF, vAT = 0, 1, 2, 3
    qA, qB, MK, ACC = 4, 8, 12, 16
    vM, vLs = 20, 21
    X, Y, P2 = 22, 26, 30
    vAL, vT1 = 34, 35
    B0, B1 = 36, 40
    vT2, vT3, vT4, vZ = 44, 45, 46, 47
    RING = 48
    WREG = 112
    WD = 184
    GP = 208
    XQH, XQL, XFH, XFL, XR = 80, 90, 216, 226, 100
    vA1, vA2, vXO, vCLR, vS1, vS2 = 236, 237, 238, 239, 240, 241
    NVGPR = 242
    AC = 22
    sK, sV, sX, sWD, sWO, sWS, sOUT, sA, sDBG = [32 + 4 * i for i in range(9)]
    sW, sT0, sT1, sT2, sOFFS, sNXT, sIT, sLOG2E, sSCALE, sSPIN, sKVH, sJ, sINB, sWID, sCNT, sNX2, sBP = range(68, 85)
    sP = 8
    sTS, sM0, sT00 = 86, 88, 90
    G_OFF = 8

    def stamp(k, src=None):
        if not diag:
            return
        if src is None:
            a('s_memrealtime s[%d:%d]' % (sTS, sTS + 1))
            a('s_waitcnt lgkmcnt(0)')
            src = sTS
        a('v_mov_b32 v%d, s%d' % (vS1, src))
        a('v_mov_b32 v%d, s%d' % (vS2, src + 1))
        a('s_lshl_b32 s%d, s2, 2' % sTS)
        a('s_add_u32 s%d, s%d, s%d' % (sTS, sTS, sW))
        a('s_lshl_b32 s%d, s%d, 7' % (sTS, sTS))
        a('s_add_u32 s%d, s%d, %d' % (sTS, sTS, TS_BASE + k * 8))
        a('s_mov_b64 s[%d:%d], exec' % (sM0, sM0 + 1))
        a('s_mov_b64 exec, 1')
        a('buffer_store_dwordx2 v[%d:%d], v%d, %s, s%d offen' % (vS1, vS2, vZ, srd(sWS), sTS))
        a('s_mov_b64 exec, s[%d:%d]' % (sM0, sM0 + 1))
        a.fence()

    def idmap(src):
        if cmap == 0:
            a('s_lshl_b32 s%d, s%d, 13' % (sNXT, src))
        elif cmap == 1:
            a('s_mul_i32 s%d, s%d, 137' % (sNXT, sKVH))
            a('s_add_u32 s%d, s%d, s%d' % (sNXT, sNXT, src))
            a('s_and_b32 s%d, s%d, 2047' % (sNXT, sNXT))
            a('s_lshl_b32 s%d, s%d, 13' % (sNXT, sNXT))
        elif cmap == 2:
            a('s_mul_i32 s%d, s%d, 1237' % (sNXT, src))
            a('s_and_b32 s%d, s%d, 2047' % (sNXT, sNXT))
            a('s_lshl_b32 s%d, s%d, 13' % (sNXT, sNXT))
        elif cmap == 3:
            a('s_and_b32 s%d, s%d, 15' % (sNXT, src))
            a('s_lshl_b32 s%d, s%d, 7' % (sNXT, sNXT))
            a('s_lshr_b32 s%d, s%d, 4' % (sT2, src))
            a('s_add_u32 s%d, s%d, s%d' % (sNXT, sNXT, sT2))
            a('s_lshl_b32 s%d, s%d, 13' % (sNXT, sNXT))
        elif cmap >= 10:
            sb = cmap % 10
            rot = (cmap // 10 - 1)
            a('s_and_b32 s%d, s%d, %d' % (sNXT, src, (1 << sb) - 1))
            a('s_lshl_b32 s%d, s%d, %d' % (sNXT, sNXT, 11 - sb))
            a('s_lshr_b32 s%d, s%d, %d' % (sT2, src, sb))
            a('s_add_u32 s%d, s%d, s%d' % (sNXT, sNXT, sT2))
            if rot:
                a('s_mul_i32 s%d, s%d, %d' % (sT2, sKVH, [0, 9, 37][rot]))
                a('s_add_u32 s%d, s%d, s%d' % (sNXT, sNXT, sT2))
                a('s_and_b32 s%d, s%d, 2047' % (sNXT, sNXT))
            a('s_lshl_b32 s%d, s%d, 13' % (sNXT, sNXT))

    def ring_load(base, isV, soff):
        for u in range(4):
            a('buffer_load_dwordx4 %s, v%d, %s, s%d offen offset:%d%s' % (vr(base + u * 4), vOFF, srd(sV if isV else sK), soff, u * 1024, NT))

    def kstep(base):
        for d in range(4):
            for u in range(4):
                a('v_dot2_f32_bf16 v%d, v%d, v%d, %s' % (X + u, base + 4 * u + d, qA + d, ('v%d' % (X + u)) if d else '0'))
            for u in range(4):
                a('v_dot2_f32_bf16 v%d, v%d, v%d, %s' % (Y + u, base + 4 * u + d, qB + d, ('v%d' % (Y + u)) if d else '0'))

    def softmax_step():
        for u in range(4):
            a('v_add_f32_dpp v%d, v%d, v%d row_ror:8 %s' % (X + u, Y + u, X + u, DPPM))
        for u in range(4):
            a('v_add_f32_dpp v%d, v%d, v%d row_half_mirror %s' % (X + u, X + u, X + u, DPPM))
        for u in range(4):
            a('v_add_f32_dpp v%d, v%d, v%d quad_perm:[1,0,3,2] %s' % (X + u, X + u, X + u, DPPM))
        for u in range(4):
            a('v_add_f32_dpp v%d, v%d, v%d quad_perm:[2,3,0,1] %s' % (X + u, X + u, X + u, DPPM))
        for pr in range(2):
            a('v_cvt_pk_bf16_f32 v%d, v%d, v%d' % (Y + pr, X + 2 * pr, X + 2 * pr + 1))
        for pr in range(2):
            a('v_lshlrev_b32 v%d, 16, v%d' % (X + 2 * pr, Y + pr))
            a('v_and_b32 v%d, 0xffff0000, v%d' % (X + 2 * pr + 1, Y + pr))
        for u in range(4):
            a('v_mul_f32 v%d, s%d, v%d' % (X + u, sSCALE, X + u))
        for pr in range(2):
            a('v_cvt_pk_bf16_f32 v%d, v%d, v%d' % (Y + pr, X + 2 * pr, X + 2 * pr + 1))
        for pr in range(2):
            a('v_lshlrev_b32 v%d, 16, v%d' % (X + 2 * pr, Y + pr))
            a('v_and_b32 v%d, 0xffff0000, v%d' % (X + 2 * pr + 1, Y + pr))
        a('v_max3_f32 v%d, v%d, v%d, v%d' % (vT1, X, X + 1, X + 2))
        a('v_max3_f32 v%d, v%d, v%d, v%d' % (vT1, vT1, X + 3, vM))
        for sw in ('v_permlane16_swap_b32', 'v_permlane32_swap_b32'):
            a('v_mov_b32 v%d, v%d' % (vT2, vT1))
            a('%s v%d, v%d' % (sw, vT1, vT2))
            a('v_max_f32 v%d, v%d, v%d' % (vT1, vT1, vT2))
        a('v_sub_f32 v%d, v%d, v%d' % (vAL, vM, vT1))
        a('v_mov_b32 v%d, v%d' % (vM, vT1))
        a('v_mul_f32 v%d, s%d, v%d' % (vAL, sLOG2E, vAL))
        a('v_mul_f32 v%d, s%d, v%d' % (vT1, sLOG2E, vT1))
        a('v_exp_f32 v%d, v%d' % (vAL, vAL))
        for u in range(4):
            a('v_fma_f32 v%d, v%d, s%d, -v%d' % (X + u, X + u, sLOG2E, vT1))
        for u in range(4):
            a('v_exp_f32 v%d, v%d' % (X + u, X + u))
        a('v_add_f32 v%d, v%d, v%d' % (vT1, X, X + 1))
        a('v_add_f32 v%d, v%d, v%d' % (vT2, X + 2, X + 3))
        for u in range(4):
            a('v_cvt_pk_bf16_f32 v%d, v%d, v%d' % (P2 + u, X + u, X + u))
        a('v_add_f32 v%d, v%d, v%d' % (vT1, vT1, vT2))
        a('v_fma_f32 v%d, v%d, v%d, v%d' % (vLs, vLs, vAL, vT1))
        for r in range(4):
            a('v_mul_f32 v%d, v%d, v%d' % (ACC + r, ACC + r, vAL))

    def vstep(base):
        for u in range(4):
            Bx = B0 if u % 2 == 0 else B1
            for r in range(4):
                a('v_and_b32 v%d, v%d, v%d' % (Bx + r, P2 + u, MK + r))
            a('v_mfma_f32_16x16x32_bf16 %s, %s, %s, %s' % (vr(ACC), vr(base + 4 * u), vr(Bx), vr(ACC)))

    def body(base, loads, waits):
        for s in range(4):
            if waits[s] is not None:
                a('s_waitcnt vmcnt(%d)' % min(waits[s], 63))
            b = base + 16 * s
            soff = sNXT if s < 2 else sNX2
            if s % 2 == 0:
                kstep(b)
                if loads:
                    ring_load(b, False, soff)
                softmax_step()
            else:
                vstep(b)
                if loads:
                    ring_load(b, True, soff)

    a.raw('.globl %s_kernel' % NAME)
    a.raw('.p2align 8')
    a.raw('.type %s_kernel,@function' % NAME)
    a.label('%s_kernel' % NAME)
    a('s_cmp_ge_u32 s2, 256')
    a('s_cbranch_scc1 L_END')
    if diag:
        a('s_memrealtime s[%d:%d]' % (sT00, sT00 + 1))
    a('s_load_dwordx16 s[8:23], s[0:1], 0')
    a('s_load_dwordx8 s[24:31], s[0:1], 64')
    a('v_and_b32 v%d, 63, v0' % vL)
    a('v_lshrrev_b32 v%d, 6, v0' % vT1)
    a('v_readfirstlane_b32 s%d, v%d' % (sW, vT1))
    a('s_lshr_b32 s%d, s2, 4' % sKVH)
    a('s_and_b32 s%d, s2, 15' % sJ)
    a('s_lshl_b32 s%d, s%d, 2' % (sWID, sJ))
    a('s_add_u32 s%d, s%d, s%d' % (sWID, sWID, sW))
    a('s_lshl_b32 s%d, s%d, 4' % (sBP, sJ))
    a('s_add_u32 s%d, s%d, s%d' % (sBP, sBP, sKVH))
    a('s_mov_b32 s%d, 0x%08x' % (sLOG2E, LOG2E))
    a('s_mov_b32 s%d, 0x%08x' % (sSCALE, SCALE))
    a('s_lshl_b32 s%d, s%d, 8' % (sCNT, sKVH))
    a('s_add_u32 s%d, s%d, 0x%x' % (sCNT, sCNT, C_BASE))
    a('v_lshlrev_b32 v%d, 4, v%d' % (vOFF, vL))
    a('v_mov_b32 v%d, 0' % vZ)
    a('v_lshlrev_b32 v%d, 1, v%d' % (vT1, vL))
    a('v_lshrrev_b32 v%d, 4, v0' % vT4)
    a('v_and_b32 v%d, 15, v0' % vT3)
    a('v_lshlrev_b32 v%d, 3, v%d' % (vT3, vT3))
    a('s_lshr_b32 s%d, s%d, 2' % (sT0, sJ))
    a('s_mul_i32 s%d, s%d, 144' % (sT0, sT0))
    a('v_add_u32 v%d, s%d, v%d' % (vT2, sT0, vT4))
    a('v_lshl_add_u32 v%d, v%d, 13, v%d' % (vA1, vT2, vT3))
    a('v_lshlrev_b32 v%d, 1, v%d' % (vT2, vT2))
    a('s_and_b32 s%d, s%d, 3' % (sT0, sKVH))
    a('s_mul_i32 s%d, s%d, 144' % (sT0, sT0))
    a('v_add_u32 v%d, s%d, v%d' % (vT4, sT0, vT4))
    a('v_mul_u32_u24 v%d, 9216, v%d' % (vA2, vT4))
    a('v_add_u32 v%d, v%d, v%d' % (vA2, vA2, vT3))
    a('v_lshlrev_b32 v%d, 1, v%d' % (vT4, vT4))
    a('s_lshl_b32 s%d, s%d, 9' % (sOFFS, sKVH))
    a('s_and_b32 s%d, s%d, 3' % (sT0, sJ))
    a('s_lshl_b32 s%d, s%d, 7' % (sT0, sT0))
    a('s_add_u32 s%d, s%d, s%d' % (sOFFS, sOFFS, sT0))
    idmap(sWID)
    a('s_add_u32 s%d, s%d, 4096' % (sNX2, sNXT))
    a('s_waitcnt lgkmcnt(0)')
    mk_srd(sX, pX, 1152)
    mk_srd(sA, pWQ, 576 * 8192)
    for i in range(9):
        a('buffer_load_ushort v%d, v%d, %s, 0 offen offset:%d' % (XR + i, vT1, srd(sX), i * 128))
    for i in range(9):
        a('buffer_load_ushort v%d, v%d, %s, 0 offen offset:%d' % (XQH + i, vT2, srd(sX), i * 32))
    for i in range(9):
        a('buffer_load_ushort v%d, v%d, %s, 0 offen offset:%d' % (XFH + i, vT4, srd(sX), i * 32))
    mx = a.vm_mark()
    qmarks = []
    for i in range(9):
        a('buffer_load_dwordx2 v[%d:%d], v%d, %s, s%d offen%s' % (WREG + 2 * i, WREG + 2 * i + 1, vA1, srd(sA), sOFFS, WNT))
        qmarks.append(a.vm_mark())
        if i < 8:
            a('s_add_u32 s%d, s%d, %d' % (sOFFS, sOFFS, 16 * 8192))
    a('s_lshl_b32 s%d, s%d, 24' % (sT0, sKVH))
    mk_srd(sK, pK, 1 << 24, sT0)
    mk_srd(sV, pV, 1 << 24, sT0)
    mk_srd(sWS, pWS, WS_SIZE)
    mk_srd(sDBG, pDBG, 256)
    mk_srd(sOUT, pOUT, 1152)
    mk_srd(sWO, pWO, 4096 * 1152)
    mk_srd(sWD, pWD, 4608 * 1152)

    def bulk():
        ring_load(RING, False, sNXT)
        ring_load(RING + 16, True, sNXT)
        fm = []
        for u in range(3):
            a('s_add_u32 s%d, s%d, %d' % (sT0, sBP, 256 * u))
            a('s_lshr_b32 s%d, s%d, 2' % (sT0, sT0))
            a('s_sub_u32 s%d, s%d, 72' % (sT1, sT0))
            a('s_cmp_lt_u32 s%d, 72' % sT0)
            a('s_cselect_b32 s%d, s%d, s%d' % (sA, pWG, pWU))
            a('s_cselect_b32 s%d, s%d, s%d' % (sA + 1, pWG + 1, pWU + 1))
            a('s_cselect_b32 s%d, s%d, s%d' % (sT1, sT0, sT1))
            a('s_lshl_b32 s%d, s%d, 7' % (sOFFS, sT1))
            a('s_cmp_lt_u32 s%d, 144' % sT0)
            a('s_cselect_b32 s%d, 0x%x, 0' % (sA + 2, 576 * 9216))
            for i in range(9):
                r = WREG + 18 + 18 * u + 2 * i
                a('buffer_load_dwordx2 v[%d:%d], v%d, %s, s%d offen%s' % (r, r + 1, vA2, srd(sA), sOFFS, WNT))
                if i < 8:
                    a('s_add_u32 s%d, s%d, %d' % (sOFFS, sOFFS, 16 * 9216))
            fm.append(a.vm_mark())
        return fm

    def bulk2():
        a('v_mul_u32_u24 v%d, 911, v0' % vA1)
        a('v_lshrrev_b32 v%d, 16, v%d' % (vA1, vA1))
        a('v_mul_u32_u24 v%d, 72, v%d' % (vA2, vA1))
        a('v_sub_u32 v%d, v0, v%d' % (vA2, vA2))
        a('v_mul_u32_u24 v%d, %d, v%d' % (vT2, 6 * 1152, vA1))
        a('v_lshl_add_u32 v%d, v%d, 4, v%d' % (vT2, vA2, vT2))
        a('v_cmp_gt_u32 vcc, 216, v0')
        a('v_cndmask_b32 v%d, -16, v%d, vcc' % (vT2, vT2))
        a('s_mul_i32 s%d, s2, %d' % (sOFFS, 18 * 1152))
        a('s_add_u32 s%d, s%d, 3456' % (sT0, sOFFS))
        for i in range(6):
            a('buffer_load_dwordx4 %s, v%d, %s, s%d offen offset:%d%s' % (vr(WD + 4 * i), vT2, srd(sWD), sOFFS if i < 3 else sT0, (i % 3) * 1152, WNT))
        a('s_mul_i32 s%d, s%d, 5120' % (sT0, sW))
        a('s_mul_i32 s%d, s2, %d' % (sOFFS, 16 * 1152))
        a('s_add_u32 s%d, s%d, s%d' % (sOFFS, sOFFS, sT0))
        a('s_add_u32 s%d, s%d, %d' % (sT0, sT0, WOBUF))
        a('s_mov_b32 m0, s%d' % sT0)
        a('s_nop 0')
        for i in range(3):
            a.raw('    buffer_load_dwordx4 v%d, %s, s%d offen offset:%d%s lds' % (vOFF, srd(sWO), sOFFS, i * 1024, WNT))
            a.vm_issued += 1
        l = a.newlabel('L_WO')
        a('s_cmp_eq_u32 s%d, 3' % sW)
        a('s_cbranch_scc1 %s' % l)
        a('s_add_u32 s%d, s%d, 3072' % (sOFFS, sOFFS))
        a('s_add_u32 s%d, s%d, 3072' % (sT0, sT0))
        a('s_mov_b32 m0, s%d' % sT0)
        a('s_nop 0')
        for i in range(2):
            a.raw('    buffer_load_dwordx4 v%d, %s, s%d offen offset:%d%s lds' % (vOFF, srd(sWO), sOFFS, i * 1024, WNT))
        a.label(l)

    vm_a = a.vm_issued
    a('s_cmp_eq_u32 s%d, 0' % sW)
    a('s_cbranch_scc1 L_NOBULK')
    bulk()
    nbulk = a.vm_issued - vm_a
    a('s_cmp_lg_u32 s%d, 1' % sW)
    a('s_cbranch_scc1 L_NOBULK')
    for k in range(4):
        a('v_mov_b32 v%d, -1' % (B1 + k))
    a('s_lshl_b32 s%d, s2, 11' % sT0)
    a('s_add_u32 s%d, s%d, 0x%x' % (sT0, sT0, O_BASE))
    a('buffer_store_dwordx4 %s, v%d, %s, s%d offen sc1' % (vr(B1), vOFF, srd(sWS), sT0))
    a('buffer_store_dwordx4 %s, v%d, %s, s%d offen offset:1024 sc1' % (vr(B1), vOFF, srd(sWS), sT0))
    a('s_cmp_lg_u32 s%d, 0' % sJ)
    a('s_cbranch_scc1 L_NOCNT')
    a('s_mov_b64 exec, 1')
    a('buffer_store_dword v%d, v%d, %s, s%d offen sc1' % (vZ, vZ, srd(sWS), sCNT))
    a('s_mov_b64 exec, -1')
    a.label('L_NOCNT')
    a('s_cmp_ge_u32 s2, 144')
    a('s_cbranch_scc1 L_NOBULK')
    a('s_lshl_b32 s%d, s2, 12' % sT0)
    a('s_add_u32 s%d, s%d, 0x%x' % (sT0, sT0, Y_BASE))
    a('s_add_u32 s%d, s%d, 0x%x' % (sT1, sT0, Z_BASE - Y_BASE))
    for k in range(4):
        a('buffer_store_dwordx4 %s, v%d, %s, s%d offen offset:%d sc1' % (vr(B1), vOFF, srd(sWS), sT0, k * 1024))
    for k in range(4):
        a('buffer_store_dwordx4 %s, v%d, %s, s%d offen offset:%d sc1' % (vr(B1), vOFF, srd(sWS), sT1, k * 1024))
    a.label('L_NOBULK')
    a('v_and_b32 v%d, 15, v%d' % (vT4, vL))
    a('v_lshlrev_b32 v%d, 4, v%d' % (vT4, vT4))
    a('v_and_b32 v%d, 16, v%d' % (vT3, vL))
    a('v_lshrrev_b32 v%d, 1, v%d' % (vT3, vT3))
    a('v_add_u32 v%d, v%d, v%d' % (vT4, vT4, vT3))
    a('v_and_b32 v%d, 32, v%d' % (vT3, vL))
    a('v_lshrrev_b32 v%d, 3, v%d' % (vT3, vT3))
    a('v_add_u32 v%d, v%d, v%d' % (vT4, vT4, vT3))
    a('s_lshl_b32 s%d, s%d, 8' % (sT0, sW))
    a('v_add_u32 v%d, s%d, v%d' % (vT4, sT0, vT4))

    def ln_apply(H, L, n):
        for i in range(n):
            a('v_lshlrev_b32 v%d, 16, v%d' % (H + i, H + i))
            a('v_sub_f32 v%d, v%d, v%d' % (H + i, H + i, vT1))
            rnd_hi(H + i, H + i)
            a('v_mul_f32 v%d, v%d, v%d' % (L + i, H + i, vLs))
            a('v_fma_f32 v%d, -v%d, v%d, v%d' % (H + i, L + i, vM, H + i))
            a('v_fmac_f32 v%d, v%d, v%d' % (L + i, H + i, vLs))
            a('v_cvt_pk_bf16_f32 v%d, v%d, v%d' % (L + i, L + i, L + i))
            a('v_and_b32 v%d, 0xffff0000, v%d' % (H + i, L + i))
            a('v_and_b32 v%d, 0xffff, v%d' % (L + i, L + i))

    def two_way_wait(n0, n1):
        l0, l1 = a.newlabel('W0'), a.newlabel('W1')
        a('s_cmp_eq_u32 s%d, 0' % sW)
        a('s_cbranch_scc1 %s' % l0)
        a('s_waitcnt vmcnt(%d)' % n1)
        a('s_branch %s' % l1)
        a.label(l0)
        a('s_waitcnt vmcnt(%d)' % n0)
        a.label(l1)

    def unit_gemv(wb, H, L, ldsoff):
        for i in range(9):
            for c in range(4):
                a('v_dot2_f32_bf16 v%d, v%d, v%d, %s' % (AC + c, wb + 2 * i + (c >> 1), (H if c & 1 else L) + i, ('v%d' % (AC + c)) if i else '0'))
        for k in range(2):
            a('v_permlane32_swap_b32 v%d, v%d' % (AC + 2 * k, AC + 2 * k + 1))
        for k in range(2):
            a('v_add_f32 v%d, v%d, v%d' % (AC + 2 * k, AC + 2 * k, AC + 2 * k + 1))
        a('v_permlane16_swap_b32 v%d, v%d' % (AC, AC + 2))
        a('v_add_f32 v%d, v%d, v%d' % (AC, AC, AC + 2))
        a('ds_write_b32 v%d, v%d offset:%d' % (vT4, AC, ldsoff))

    two_way_wait(9, 9 + nbulk)
    for i in range(9):
        a('v_lshlrev_b32 v%d, 16, v%d' % (XR + i, XR + i))
    a('v_add_f32 v%d, v%d, v%d' % (vT1, XR, XR + 1))
    for i in range(2, 9):
        a('v_add_f32 v%d, v%d, v%d' % (vT1, vT1, XR + i))
    allreduce(vT1, 'v_add_f32', vAL)
    a('v_mul_f32 v%d, 0x%08x, v%d' % (vT1, f2u(1.0 / 576), vT1))
    a('v_sub_f32 v%d, v%d, v%d' % (XR, XR, vT1))
    a('v_mul_f32 v%d, v%d, v%d' % (vM, XR, XR))
    for i in range(1, 9):
        a('v_sub_f32 v%d, v%d, v%d' % (XR + i, XR + i, vT1))
        a('v_fmac_f32 v%d, v%d, v%d' % (vM, XR + i, XR + i))
    allreduce(vM, 'v_add_f32', vAL)
    a('v_mul_f32 v%d, 0x%08x, v%d' % (vM, f2u(1.0 / 576), vM))
    rnd_hi(vT1, vT1)
    rnd_hi(vM, vM)
    a('v_add_f32 v%d, 0x%08x, v%d' % (vM, f2u(1e-5), vM))
    rnd_hi(vM, vM)
    a('v_sqrt_f32 v%d, v%d' % (vM, vM))
    rnd_hi(vM, vM)
    a('v_rcp_f32 v%d, v%d' % (vLs, vM))
    ln_apply(XQH, XQL, 9)
    a.fence()
    two_way_wait(0, nbulk)
    unit_gemv(WREG, XQH, XQL, CBUF)
    a('s_waitcnt lgkmcnt(0)')
    a('s_barrier')
    a('s_cmp_lg_u32 s%d, 0' % sW)
    a('s_cbranch_scc1 L_QP')
    a('v_lshlrev_b32 v%d, 2, v%d' % (vT3, vL))
    for w in range(4):
        a('ds_read_b32 v%d, v%d offset:%d' % (AC + w, vT3, CBUF + w * 256))
    a('s_lshr_b32 s%d, s%d, 2' % (sT1, sJ))
    a('s_mul_i32 s%d, s%d, %d' % (sT1, sT1, PSTR))
    a('s_lshl_b32 s%d, s%d, 10' % (sT0, sKVH))
    a('s_add_u32 s%d, s%d, s%d' % (sT1, sT1, sT0))
    a('s_and_b32 s%d, s%d, 3' % (sT0, sJ))
    a('s_lshl_b32 s%d, s%d, 8' % (sT0, sT0))
    a('s_add_u32 s%d, s%d, s%d' % (sT1, sT1, sT0))
    a('s_waitcnt lgkmcnt(0)')
    a('v_add_f32 v%d, v%d, v%d' % (AC, AC, AC + 1))
    a('v_add_f32 v%d, v%d, v%d' % (AC + 2, AC + 2, AC + 3))
    a('v_add_f32 v%d, v%d, v%d' % (AC, AC, AC + 2))
    a('buffer_store_dword v%d, v%d, %s, s%d offen sc1' % (AC, vT3, srd(sWS), sT1))
    a('s_lshl_b32 s%d, s%d, 4' % (sT0, sKVH))
    a('v_mov_b32 v%d, 1' % vT3)
    a('s_waitcnt vmcnt(0)')
    a('s_mov_b64 exec, 1')
    a('buffer_atomic_add v%d, v%d, %s, s%d offen' % (vT3, vZ, srd(sDBG), sT0))
    a('s_mov_b64 exec, -1')
    stamp(1)
    bulk()
    a.fence()
    a.label('L_QP')
    ln_apply(XFH, XFL, 9)
    a.vm_issued = 0
    bulk2()
    n2 = a.vm_issued
    for u in range(3):
        a('s_waitcnt vmcnt(%d)' % (n2 + 9 * (2 - u)))
        unit_gemv(WREG + 18 + 18 * u, XFH, XFL, CBUF + 1024 * (u + 1))
    stamp(0, sT00)
    a('s_cmp_lg_u32 s%d, 0' % sW)
    a('s_cbranch_scc1 L_WQ')
    a('s_lshl_b32 s%d, s%d, 10' % (sT1, sKVH))
    a('s_lshl_b32 s%d, s%d, 4' % (sT0, sKVH))
    a('s_mov_b32 s%d, %d' % (sSPIN, spin))
    a.fence()
    a.label('L_QPOLL')
    a('buffer_load_dword v%d, v%d, %s, s%d offen sc1' % (vT3, vZ, srd(sDBG), sT0))
    a('s_waitcnt vmcnt(0)')
    a('v_readfirstlane_b32 s%d, v%d' % (sT2, vT3))
    a('s_sub_u32 s%d, s%d, 1' % (sSPIN, sSPIN))
    a('s_cbranch_scc1 L_QGO')
    a('s_cmp_ge_u32 s%d, 16' % sT2)
    a('s_cbranch_scc0 L_QPOLL')
    a.label('L_QGO')
    for r in range(4):
        a('buffer_load_dwordx4 %s, v%d, %s, s%d offen sc1' % (vr(WREG + 4 * r), vOFF, srd(sWS), sT1))
        if r < 3:
            a('s_add_u32 s%d, s%d, %d' % (sT1, sT1, PSTR))
    stamp(13)
    a('v_lshlrev_b32 v%d, 3, v%d' % (vT1, vL))
    a('s_waitcnt vmcnt(%d)' % (1 if diag else 0))
    for k in range(4):
        a('v_add_f32 v%d, v%d, v%d' % (WREG + k, WREG + k, WREG + 4 + k))
        a('v_add_f32 v%d, v%d, v%d' % (WREG + 8 + k, WREG + 8 + k, WREG + 12 + k))
        a('v_add_f32 v%d, v%d, v%d' % (WREG + k, WREG + k, WREG + 8 + k))
    a('v_cvt_pk_bf16_f32 v%d, v%d, v%d' % (WREG, WREG, WREG + 1))
    a('v_cvt_pk_bf16_f32 v%d, v%d, v%d' % (WREG + 1, WREG + 2, WREG + 3))
    a('ds_write_b64 v%d, v[%d:%d] offset:%d' % (vT1, WREG, WREG + 1, QBUF))
    a.fence()
    a.label('L_WQ')
    a('v_and_b32 v%d, 7, v%d' % (vT1, vL))
    a('v_lshrrev_b32 v%d, 1, v%d' % (vT2, vT1))
    a('v_and_b32 v%d, 1, v%d' % (vT3, vT1))
    a('v_lshlrev_b32 v%d, 4, v%d' % (vT3, vT3))
    a('v_mov_b32 v%d, 0xffff' % vT4)
    a('v_lshlrev_b32 v%d, v%d, v%d' % (vT4, vT3, vT4))
    for r in range(4):
        a('v_cmp_eq_u32 vcc, %d, v%d' % (r, vT2))
        a('v_cndmask_b32 v%d, 0, v%d, vcc' % (MK + r, vT4))
    for r in range(4):
        a('v_mov_b32 v%d, 0' % (ACC + r))
    a('v_mov_b32 v%d, 0xff800000' % vM)
    a('v_mov_b32 v%d, 0' % vLs)
    a('s_sub_u32 s%d, s%d, 64' % (sT0, sWID))
    a('v_mov_b32 v%d, s%d' % (vAT, sT0))
    a('v_and_b32 v%d, 15, v%d' % (vT1, vL))
    a('v_lshlrev_b32 v%d, 4, v%d' % (vT1, vT1))
    a('v_and_b32 v%d, 8, v%d' % (vT2, vL))
    a('v_lshl_add_u32 v%d, v%d, 5, v%d' % (vT1, vT2, vT1))
    a('v_xor_b32 v%d, 256, v%d' % (vT2, vT1))
    a('s_waitcnt lgkmcnt(0)')
    a('s_barrier')
    a('ds_read_b128 %s, v%d offset:%d' % (vr(qA), vT1, QBUF))
    a('ds_read_b128 %s, v%d offset:%d' % (vr(qB), vT2, QBUF))
    a('s_cmp_lg_u32 s%d, 1' % sW)
    a('s_cbranch_scc1 L_NOPUB')
    a('v_lshlrev_b32 v%d, 2, v%d' % (vT3, vL))
    for u in range(3):
        for w in range(4):
            a('ds_read_b32 v%d, v%d offset:%d' % (WREG + 4 * u + w, vT3, CBUF + 1024 * (u + 1) + w * 256))
    a('s_and_b32 s%d, s%d, 3' % (sT1, sKVH))
    a('s_mul_i32 s%d, s%d, %d' % (sT1, sT1, PSTR))
    a('s_lshr_b32 s%d, s%d, 2' % (sT0, sBP))
    a('s_lshl_b32 s%d, s%d, 8' % (sT0, sT0))
    a('s_add_u32 s%d, s%d, s%d' % (sT1, sT1, sT0))
    a('s_add_u32 s%d, s%d, %d' % (sT1, sT1, 4096 * 4))
    a('s_waitcnt lgkmcnt(0)')
    for u in range(3):
        r = WREG + 4 * u
        a('v_add_f32 v%d, v%d, v%d' % (r, r, r + 1))
        a('v_add_f32 v%d, v%d, v%d' % (r + 2, r + 2, r + 3))
        a('v_add_f32 v%d, v%d, v%d' % (r, r, r + 2))
        if u == 2:
            a('s_cmp_ge_u32 s%d, 64' % sBP)
            a('s_cbranch_scc1 L_NOPUB')
        a('buffer_store_dword v%d, v%d, %s, s%d offen sc1' % (r, vT3, srd(sWS), sT1))
        a('s_add_u32 s%d, s%d, %d' % (sT1, sT1, 64 * 256))
    a.label('L_NOPUB')
    a('s_waitcnt lgkmcnt(0)')
    stamp(2)

    def half(soff, w0, w1, loads=True):
        if w0 is not None:
            a('s_waitcnt vmcnt(%d)' % w0)
        kstep(RING)
        if loads:
            ring_load(RING, False, soff)
        softmax_step()
        a('s_waitcnt vmcnt(%d)' % w1)
        vstep(RING + 16)
        if loads:
            ring_load(RING + 16, True, soff)
    a('s_mov_b32 s%d, 0' % sIT)
    a.fence()
    a.raw('.p2align 6')
    a.label('L_LOOP')
    a('s_add_u32 s%d, s%d, 4096' % (sNX2, sNXT))
    half(sNX2, 4, 4)
    a('s_waitcnt vmcnt(4)')
    a('s_cmp_gt_u32 s%d, %d' % (sIT, NS - 1))
    a('s_cbranch_scc1 L_DYN')
    a('s_branch L_SPECIAL')
    a.label('L_DYN')
    a('v_readfirstlane_b32 s%d, v%d' % (sT0, vAT))
    a('s_add_u32 s%d, s%d, %d' % (sT0, sT0, NS * 64))
    a('s_cmp_ge_u32 s%d, %d' % (sT0, NCH))
    a('s_cbranch_scc1 L_LAST')
    a('v_mov_b32 v%d, 1' % vAT)
    a('s_mov_b64 exec, 1')
    a('buffer_atomic_add v%d, v%d, %s, s%d offen sc0' % (vAT, vZ, srd(sWS), sCNT))
    a('s_mov_b64 exec, -1')
    a.label('L_GOTID')
    idmap(sT0)
    half(sNXT, None, 5)
    if diag:
        a('s_memrealtime s[%d:%d]' % (sTS, sTS + 1))
        a('s_waitcnt lgkmcnt(0)')
        a('v_mov_b32 v%d, s%d' % (vS1, sTS))
        a('v_mov_b32 v%d, s%d' % (vS2, sTS + 1))
        a('s_lshl_b32 s%d, s2, 2' % sTS)
        a('s_add_u32 s%d, s%d, s%d' % (sTS, sTS, sW))
        a('s_lshl_b32 s%d, s%d, 6' % (sTS, sTS))
        a('s_add_u32 s%d, s%d, s%d' % (sTS, sTS, sIT))
        a('s_lshl_b32 s%d, s%d, 3' % (sTS, sTS))
        a('s_add_u32 s%d, s%d, 0x%x' % (sTS, sTS, 0x340000))
        a('s_mov_b64 exec, 1')
        a('buffer_store_dwordx2 v[%d:%d], v%d, %s, s%d offen' % (vS1, vS2, vZ, srd(sWS), sTS))
        a('s_mov_b64 exec, -1')
    a('s_add_u32 s%d, s%d, 1' % (sIT, sIT))
    a.fence()
    a('s_branch L_LOOP')
    a.label('L_SPECIAL')
    a('s_cmp_eq_u32 s%d, %d' % (sIT, NS - 1))
    a('s_cbranch_scc1 L_SP_FFN')
    a('s_cmp_eq_u32 s%d, %d' % (sIT, NS - 2))
    a('s_cbranch_scc1 L_SP_VER')
    a('s_cmp_lg_u32 s%d, %d' % (sIT, NS - 3))
    a('s_cbranch_scc1 L_SP_1')
    a('buffer_load_dword v%d, v%d, %s, 0 offen offset:%d sc1' % (vCLR, vZ, srd(sDBG), G_OFF))
    a.label('L_SP_1')
    a('s_cmp_lg_u32 s%d, 1' % sIT)
    a('s_cbranch_scc1 L_SP_ST')
    a('s_cmp_lg_u32 s%d, 1' % sW)
    a('s_cbranch_scc1 L_SP_ST')
    a('v_mov_b32 v%d, 1' % vT3)
    a('s_mov_b64 exec, 1')
    a('buffer_atomic_add v%d, v%d, %s, 0 offen offset:%d' % (vT3, vZ, srd(sDBG), G_OFF))
    a('s_mov_b64 exec, -1')
    a.label('L_SP_ST')
    a('s_add_u32 s%d, s%d, 1' % (sT0, sIT))
    a('s_lshl_b32 s%d, s%d, 6' % (sT0, sT0))
    a('s_add_u32 s%d, s%d, s%d' % (sT0, sT0, sWID))
    a('s_waitcnt vmcnt(4)')
    idmap(sT0)
    a.fence()
    half(sNXT, None, 4)
    a('s_add_u32 s%d, s%d, 1' % (sIT, sIT))
    a.fence()
    a('s_branch L_LOOP')
    a.label('L_SP_VER')
    a('v_readfirstlane_b32 s%d, v%d' % (sT2, vCLR))
    a('s_mov_b32 s%d, %d' % (sSPIN, spin))
    a('s_cmp_ge_u32 s%d, 256' % sT2)
    a('s_cbranch_scc1 L_SP_OK')
    a.label('L_GPOLL')
    a('buffer_load_dword v%d, v%d, %s, 0 offen offset:%d sc1' % (vCLR, vZ, srd(sDBG), G_OFF))
    a('s_waitcnt vmcnt(0)')
    a('v_readfirstlane_b32 s%d, v%d' % (sT2, vCLR))
    a('s_sub_u32 s%d, s%d, 1' % (sSPIN, sSPIN))
    a('s_cbranch_scc1 L_SP_OK')
    a('s_cmp_ge_u32 s%d, 256' % sT2)
    a('s_cbranch_scc0 L_GPOLL')
    a.label('L_SP_OK')
    a('s_mul_i32 s%d, s2, 72' % sT0)
    a('s_add_u32 s%d, s%d, %d' % (sT0, sT0, 4096 * 4))
    a('v_lshlrev_b32 v%d, 2, v%d' % (vT1, vL))
    for r in range(4):
        a('buffer_load_dword v%d, v%d, %s, s%d offen sc1' % (GP + r, vT1, srd(sWS), sT0))
        a('s_add_u32 s%d, s%d, %d' % (sT1, sT0, 4608 * 4))
        a('buffer_load_dword v%d, v%d, %s, s%d offen sc1' % (GP + 4 + r, vT1, srd(sWS), sT1))
        if r < 3:
            a('s_add_u32 s%d, s%d, %d' % (sT0, sT0, PSTR))
    a.fence()
    a('s_branch L_DYN')
    a.label('L_SP_FFN')
    for b in (GP, GP + 4):
        a('v_add_f32 v%d, v%d, v%d' % (b, b, b + 1))
        a('v_add_f32 v%d, v%d, v%d' % (b + 2, b + 2, b + 3))
        a('v_add_f32 v%d, v%d, v%d' % (b, b, b + 2))
        rnd_hi(b, b)
    a('v_mul_f32 v%d, s%d, v%d' % (GP + 1, sLOG2E, GP))
    a('v_exp_f32 v%d, -v%d' % (GP + 1, GP + 1))
    a('v_add_f32 v%d, 1.0, v%d' % (GP + 1, GP + 1))
    a('v_rcp_f32 v%d, v%d' % (GP + 1, GP + 1))
    a('v_mul_f32 v%d, v%d, v%d' % (GP + 1, GP + 1, GP))
    rnd_hi(GP + 1, GP + 1)
    a('v_mul_f32 v%d, v%d, v%d' % (GP + 1, GP + 1, GP + 4))
    rnd_hi(GP + 1, GP + 1)
    a('v_mul_u32_u24 v%d, 24, v%d' % (vT1, vA1))
    HH, HL = WREG + 40, WREG + 48
    for i in range(6):
        a('v_add_u32 v%d, %d, v%d' % (vT2, 4 * i, vT1))
        a('ds_bpermute_b32 v%d, v%d, v%d' % (HH + i, vT2, GP + 1))
    a('v_mul_u32_u24 v%d, 2304, v%d' % (vT1, vA1))
    a('v_lshl_add_u32 v%d, v%d, 5, v%d' % (vT1, vA2, vT1))
    a('s_waitcnt lgkmcnt(0)')
    for i in range(6):
        a('v_lshrrev_b32 v%d, 16, v%d' % (HL + i, HH + i))
    for i in range(6):
        for c in range(8):
            a('v_dot2_f32_bf16 v%d, v%d, v%d, %s' % (B0 + c, WD + 4 * i + (c >> 1), (HH if c & 1 else HL) + i, ('v%d' % (B0 + c)) if i else '0'))
    a('ds_write_b128 v%d, %s offset:%d' % (vT1, vr(B0), ZBUF))
    a('ds_write_b128 v%d, %s offset:%d' % (vT1, vr(B0 + 4), ZBUF + 16))
    a.fence()
    a('s_branch L_DYN')
    a.label('L_LAST')
    half(None, None, 0, loads=False)
    a.fence()
    stamp(3)
    for sw in ('v_permlane16_swap_b32', 'v_permlane32_swap_b32'):
        a('v_mov_b32 v%d, v%d' % (vT2, vLs))
        a('%s v%d, v%d' % (sw, vLs, vT2))
        a('v_add_f32 v%d, v%d, v%d' % (vLs, vLs, vT2))
    a('v_lshrrev_b32 v%d, 4, v%d' % (vT1, vL))
    a('v_lshlrev_b32 v%d, 7, v%d' % (vT1, vT1))
    a('v_and_b32 v%d, 7, v%d' % (vT2, vL))
    a('v_lshl_add_u32 v%d, v%d, 2, v%d' % (vT1, vT2, vT1))
    a('v_and_b32 v%d, 8, v%d' % (vT2, vL))
    a('v_lshl_add_u32 v%d, v%d, 6, v%d' % (vT1, vT2, vT1))
    a('s_lshl_b32 s%d, s%d, 10' % (sT0, sW))
    a('v_add_u32 v%d, s%d, v%d' % (vT1, sT0, vT1))
    for r in range(4):
        a('ds_write_b32 v%d, v%d offset:%d' % (vT1, ACC + r, CBUF + r * 32))
    a('s_lshl_b32 s%d, s%d, 4' % (sT0, sW))
    a('v_add_u32 v%d, s%d, v%d' % (vT2, sT0, vT2))
    a('s_mov_b64 exec, 0x101')
    a('ds_write_b64 v%d, v[%d:%d] offset:%d' % (vT2, vM, vLs, MLBUF))
    a('s_mov_b64 exec, -1')
    a('s_waitcnt lgkmcnt(0)')
    a('s_barrier')
    a('s_cmp_lg_u32 s%d, 0' % sW)
    a('s_cbranch_scc1 L_T2')
    OW = RING
    MLW = RING + 16
    a('v_lshlrev_b32 v%d, 4, v%d' % (vT1, vL))
    for w in range(4):
        a('ds_read_b128 %s, v%d offset:%d' % (vr(OW + 4 * w), vT1, CBUF + w * 1024))
    a('v_lshrrev_b32 v%d, 5, v%d' % (vT2, vL))
    a('v_lshlrev_b32 v%d, 3, v%d' % (vT2, vT2))
    for w in range(4):
        a('ds_read_b64 v[%d:%d], v%d offset:%d' % (MLW + 2 * w, MLW + 2 * w + 1, vT2, MLBUF + w * 16))
    a('v_lshrrev_b32 v%d, 2, v%d' % (vT3, vL))
    a('v_lshlrev_b32 v%d, 11, v%d' % (vT3, vT3))
    a('v_and_b32 v%d, 3, v%d' % (vT4, vL))
    a('v_lshl_add_u32 v%d, v%d, 4, v%d' % (vT4, vT4, vT3))
    a('s_lshl_b32 s%d, s%d, 15' % (sT0, sKVH))
    a('s_add_u32 s%d, s%d, 0x%x' % (sT0, sT0, O_BASE))
    a('s_lshl_b32 s%d, s%d, 6' % (sT1, sJ))
    a('s_add_u32 s%d, s%d, s%d' % (sT1, sT1, sT0))
    a('s_lshl_b32 s%d, s%d, 4' % (sT2, sJ))
    a('s_add_u32 s%d, s%d, s%d' % (sT2, sT2, sT0))
    a('s_waitcnt lgkmcnt(0)')
    a('v_max3_f32 v%d, v%d, v%d, v%d' % (B0, MLW, MLW + 2, MLW + 4))
    a('v_max_f32 v%d, v%d, v%d' % (B0, B0, MLW + 6))
    for w in range(4):
        a('v_sub_f32 v%d, v%d, v%d' % (MLW + 2 * w, MLW + 2 * w, B0))
        a('v_mul_f32 v%d, s%d, v%d' % (MLW + 2 * w, sLOG2E, MLW + 2 * w))
        a('v_exp_f32 v%d, v%d' % (MLW + 2 * w, MLW + 2 * w))
    a('v_mul_f32 v%d, v%d, v%d' % (B0 + 1, MLW, MLW + 1))
    for w in range(1, 4):
        a('v_fmac_f32 v%d, v%d, v%d' % (B0 + 1, MLW + 2 * w, MLW + 2 * w + 1))
    for k in range(4):
        a('v_mul_f32 v%d, v%d, v%d' % (B1 + k, OW + k, MLW))
        for w in range(1, 4):
            a('v_fmac_f32 v%d, v%d, v%d' % (B1 + k, OW + 4 * w + k, MLW + 2 * w))
    for k in range(4):
        a('v_min_u32 v%d, -2, v%d' % (B1 + k, B1 + k))
    a('v_min_u32 v%d, -2, v%d' % (B0, B0))
    a('v_min_u32 v%d, -2, v%d' % (B0 + 1, B0 + 1))
    a('buffer_store_dwordx4 %s, v%d, %s, s%d offen sc1' % (vr(B1), vT4, srd(sWS), sT1))
    a('s_mov_b32 exec_lo, 0x11111111')
    a('s_mov_b32 exec_hi, 0x11111111')
    a('buffer_store_dwordx2 v[%d:%d], v%d, %s, s%d offen offset:1024 sc1' % (B0, B0 + 1, vT3, srd(sWS), sT2))
    a('s_mov_b64 exec, -1')
    a.fence()
    a('s_branch L_HOP1')
    a.label('L_T2')
    a('v_subrev_u32 v%d, 112, v0' % vT1)
    a('v_lshlrev_b32 v%d, 4, v%d' % (vT2, vT1))
    a('v_cmp_gt_u32 vcc, 144, v%d' % vT1)
    a('s_and_saveexec_b64 s[%d:%d], vcc' % (sM0, sM0 + 1))
    for g in range(3):
        a('ds_read_b128 %s, v%d offset:%d' % (vr(RING + 4 * g), vT2, ZBUF + g * 2304))
    a('v_lshlrev_b32 v%d, 12, v%d' % (vT1, vT1))
    a('s_lshl_b32 s%d, s2, 4' % sT0)
    a('s_add_u32 s%d, s%d, 0x%x' % (sT0, sT0, Z_BASE))
    a('s_waitcnt lgkmcnt(0)')
    for k in range(4):
        a('v_add_f32 v%d, v%d, v%d' % (RING + k, RING + k, RING + 4 + k))
        a('v_add_f32 v%d, v%d, v%d' % (RING + k, RING + k, RING + 8 + k))
        a('v_min_u32 v%d, -2, v%d' % (RING + k, RING + k))
    a('buffer_store_dwordx4 %s, v%d, %s, s%d offen sc1' % (vr(RING), vT1, srd(sWS), sT0))
    a('s_mov_b64 exec, -1')
    a.fence()
    a('s_cmp_ge_u32 s%d, 2' % sW)
    a('s_cbranch_scc1 L_HOP2')
    a.label('L_HOP1')
    a('v_lshlrev_b32 v%d, 4, v0' % vT1)
    for i in range(16):
        a('ds_read_b128 %s, v%d offset:%d' % (vr(WREG + 4 * i), vT1, WOBUF + i * 1152))
    O4 = RING + 32
    ML = RING + 36
    a('v_lshlrev_b32 v%d, 4, v%d' % (vT1, vL))
    a('v_lshrrev_b32 v%d, 2, v%d' % (vT2, vL))
    a('v_lshlrev_b32 v%d, 4, v%d' % (vT2, vT2))
    a('s_lshl_b32 s%d, s2, 11' % sINB)
    a('s_add_u32 s%d, s%d, 0x%x' % (sINB, sINB, O_BASE))
    a('buffer_load_dwordx4 %s, v%d, %s, s%d offen sc1' % (vr(O4), vT1, srd(sWS), sINB))
    a('buffer_load_dwordx2 v[%d:%d], v%d, %s, s%d offen offset:1024 sc1' % (ML, ML + 1, vT2, srd(sWS), sINB))
    a('s_mov_b32 s%d, %d' % (sSPIN, spin))
    a('s_mov_b32 s%d, 0x05040100' % sT0)
    a('s_mov_b32 s%d, 0x07060302' % sT1)
    a('s_waitcnt lgkmcnt(0)')
    for p in range(8):
        for d in range(4):
            r0, r1 = WREG + 8 * p + d, WREG + 8 * p + 4 + d
            a('v_perm_b32 v%d, v%d, v%d, s%d' % (vT3, r1, r0, sT0))
            a('v_perm_b32 v%d, v%d, v%d, s%d' % (r1, r1, r0, sT1))
            a('v_mov_b32 v%d, v%d' % (r0, vT3))
    a.fence()
    a('s_branch L_H1CHK')
    a.label('L_H1POLL')
    a('buffer_load_dwordx4 %s, v%d, %s, s%d offen sc1' % (vr(O4), vT1, srd(sWS), sINB))
    a('buffer_load_dwordx2 v[%d:%d], v%d, %s, s%d offen offset:1024 sc1' % (ML, ML + 1, vT2, srd(sWS), sINB))
    a.label('L_H1CHK')
    a('s_waitcnt vmcnt(0)')
    a('v_max3_u32 v%d, v%d, v%d, v%d' % (vT3, O4, O4 + 1, O4 + 2))
    a('v_max3_u32 v%d, v%d, v%d, v%d' % (vT4, O4 + 3, ML, ML + 1))
    a('v_max_u32 v%d, v%d, v%d' % (vT3, vT3, vT4))
    a('v_cmp_eq_u32 vcc, -1, v%d' % vT3)
    a('s_sub_u32 s%d, s%d, 1' % (sSPIN, sSPIN))
    a('s_cbranch_scc1 L_H1GO')
    a('s_cbranch_vccnz L_H1POLL')
    a.label('L_H1GO')
    stamp(4)
    a('v_mov_b32 v%d, v%d' % (vT3, ML))
    allreduce(vT3, 'v_max_f32', vT4, steps=(4, 8))
    a('v_sub_f32 v%d, v%d, v%d' % (ML, ML, vT3))
    a('v_mul_f32 v%d, s%d, v%d' % (ML, sLOG2E, ML))
    a('v_exp_f32 v%d, v%d' % (ML, ML))
    a('v_mul_f32 v%d, v%d, v%d' % (ML + 1, ML + 1, ML))
    for k in range(4):
        a('v_mul_f32 v%d, v%d, v%d' % (O4 + k, O4 + k, ML))
    regs5 = [O4, O4 + 1, O4 + 2, O4 + 3, ML + 1]
    tmps5 = [B0, B0 + 1, B0 + 2, B0 + 3, B1]
    for s in (4, 8):
        for rg in regs5:
            a('v_add_f32_dpp v%d, v%d, v%d row_ror:%d %s' % (rg, rg, rg, s, DPPM))
    for sw in ('v_permlane16_swap_b32', 'v_permlane32_swap_b32'):
        for rg, t in zip(regs5, tmps5):
            a('v_mov_b32 v%d, v%d' % (t, rg))
        for rg, t in zip(regs5, tmps5):
            a('%s v%d, v%d' % (sw, rg, t))
        for rg, t in zip(regs5, tmps5):
            a('v_add_f32 v%d, v%d, v%d' % (rg, rg, t))
    a('v_rcp_f32 v%d, v%d' % (vT3, ML + 1))
    for k in range(4):
        a('v_mul_f32 v%d, v%d, v%d' % (B0 + k, O4 + k, vT3))
        a('v_fma_f32 v%d, -v%d, v%d, v%d' % (O4 + k, B0 + k, ML + 1, O4 + k))
        a('v_fmac_f32 v%d, v%d, v%d' % (B0 + k, O4 + k, vT3))
    a('v_cvt_pk_bf16_f32 v%d, v%d, v%d' % (B1, B0, B0 + 1))
    a('v_cvt_pk_bf16_f32 v%d, v%d, v%d' % (B1 + 1, B0 + 2, B0 + 3))
    for c in range(4):
        for hlf in range(2):
            a('v_readlane_b32 s%d, v%d, %d' % (sP + 2 * c + hlf, B1 + hlf, c))
    YA = RING + 40
    for p in range(8):
        for col in range(8):
            src = WREG + 8 * p + (4 if col & 1 else 0) + (col >> 1)
            a('v_dot2_f32_bf16 v%d, v%d, s%d, %s' % (YA + col, src, sP + p, ('v%d' % (YA + col)) if p else '0'))
    a('v_lshlrev_b32 v%d, 13, v0' % vT1)
    a('s_lshl_b32 s%d, s2, 4' % sT0)
    a('s_add_u32 s%d, s%d, 0x%x' % (sT0, sT0, Y_BASE))
    a('s_add_u32 s%d, s%d, 4096' % (sT1, sT0))
    for col in range(8):
        a('v_min_u32 v%d, -2, v%d' % (YA + col, YA + col))
    a('v_cmp_gt_u32 vcc, 72, v0')
    a('s_and_saveexec_b64 s[%d:%d], vcc' % (sM0, sM0 + 1))
    a('buffer_store_dwordx4 %s, v%d, %s, s%d offen sc1' % (vr(YA), vT1, srd(sWS), sT0))
    a('buffer_store_dwordx4 %s, v%d, %s, s%d offen sc1' % (vr(YA + 4), vT1, srd(sWS), sT1))
    a('s_mov_b64 exec, -1')
    a.fence()
    a.label('L_HOP2')
    a('s_cmp_ge_u32 s2, 144')
    a('s_cbranch_scc1 L_END')
    YV = RING
    ZV = RING + 4
    a('v_lshlrev_b32 v%d, 4, v0' % vT1)
    a('s_lshl_b32 s%d, s2, 12' % sT0)
    a('s_add_u32 s%d, s%d, 0x%x' % (sT0, sT0, Y_BASE))
    a('s_add_u32 s%d, s%d, 0x%x' % (sT1, sT0, Z_BASE - Y_BASE))
    a('s_lshl_b32 s%d, s2, 3' % sT2)
    a('v_lshlrev_b32 v%d, 1, v%d' % (vA1, vL))
    a('buffer_load_ushort v%d, v%d, %s, s%d offen' % (vXO, vA1, srd(sX), sT2))
    a('s_mov_b32 s%d, %d' % (sSPIN, spin))
    a.fence()
    a.label('L_H2POLL')
    a('buffer_load_dwordx4 %s, v%d, %s, s%d offen sc1' % (vr(YV), vT1, srd(sWS), sT0))
    a('buffer_load_dwordx4 %s, v%d, %s, s%d offen sc1' % (vr(ZV), vT1, srd(sWS), sT1))
    a('s_waitcnt vmcnt(0)')
    a('v_max3_u32 v%d, v%d, v%d, v%d' % (vT3, YV, YV + 1, YV + 2))
    a('v_max3_u32 v%d, v%d, v%d, v%d' % (vT4, YV + 3, ZV, ZV + 1))
    a('v_max3_u32 v%d, v%d, v%d, v%d' % (vT3, vT3, ZV + 2, ZV + 3))
    a('v_max_u32 v%d, v%d, v%d' % (vT3, vT3, vT4))
    a('v_cmp_eq_u32 vcc, -1, v%d' % vT3)
    a('s_sub_u32 s%d, s%d, 1' % (sSPIN, sSPIN))
    a('s_cbranch_scc1 L_H2GO')
    a('s_cbranch_vccnz L_H2POLL')
    a.label('L_H2GO')
    stamp(5)
    for k in range(4):
        a('v_permlane32_swap_b32 v%d, v%d' % (YV + k, ZV + k))
    for k in range(4):
        a('v_add_f32 v%d, v%d, v%d' % (YV + k, YV + k, ZV + k))
    a('v_permlane16_swap_b32 v%d, v%d' % (YV, YV + 1))
    a('v_permlane16_swap_b32 v%d, v%d' % (YV + 2, YV + 3))
    a('v_add_f32 v%d, v%d, v%d' % (ZV, YV, YV + 1))
    a('v_add_f32 v%d, v%d, v%d' % (ZV + 1, YV + 2, YV + 3))
    for s in (8, 4, 2, 1):
        for k in range(2):
            a('v_add_f32_dpp v%d, v%d, v%d row_ror:%d %s' % (ZV + k, ZV + k, ZV + k, s, DPPM))
    a('v_lshrrev_b32 v%d, 1, v%d' % (vT1, vL))
    a('s_lshl_b32 s%d, s%d, 5' % (sT0, sW))
    a('v_add_u32 v%d, s%d, v%d' % (vT1, sT0, vT1))
    a('s_mov_b32 exec_lo, 0x00010001')
    a('s_mov_b32 exec_hi, 0x00010001')
    a('ds_write_b64 v%d, v[%d:%d] offset:%d' % (vT1, ZV, ZV + 1, RBUF))
    a('s_mov_b64 exec, -1')
    a('s_waitcnt lgkmcnt(0)')
    a('s_barrier')
    a('s_cmp_lg_u32 s%d, 0' % sW)
    a('s_cbranch_scc1 L_END')
    a('v_and_b32 v%d, 1, v%d' % (vT1, vL))
    a('v_lshlrev_b32 v%d, 3, v%d' % (vT1, vT1))
    a('v_and_b32 v%d, 2, v%d' % (vT2, vL))
    a('v_lshl_add_u32 v%d, v%d, 1, v%d' % (vT1, vT2, vT1))
    for w in range(4):
        a('ds_read_b32 v%d, v%d offset:%d' % (YV + w, vT1, RBUF + w * 32))
        a('ds_read_b32 v%d, v%d offset:%d' % (ZV + w, vT1, RBUF + w * 32 + 16))
    a('s_waitcnt lgkmcnt(0)')
    for base in (YV, ZV):
        a('v_add_f32 v%d, v%d, v%d' % (base, base, base + 1))
        a('v_add_f32 v%d, v%d, v%d' % (base + 2, base + 2, base + 3))
        a('v_add_f32 v%d, v%d, v%d' % (base, base, base + 2))
        rnd_hi(base, base)
    a('v_mul_f32 v%d, s%d, v%d' % (vT1, sLOG2E, ZV))
    a('v_exp_f32 v%d, -v%d' % (vT1, vT1))
    a('v_add_f32 v%d, 1.0, v%d' % (vT1, vT1))
    a('v_rcp_f32 v%d, v%d' % (vT1, vT1))
    a('v_mul_f32 v%d, v%d, v%d' % (vT1, vT1, ZV))
    rnd_hi(vT1, vT1)
    a('v_mul_f32 v%d, v%d, v%d' % (vT1, vT1, YV))
    rnd_hi(vT1, vT1)
    a('v_lshlrev_b32 v%d, 16, v%d' % (vXO, vXO))
    a('v_add_f32 v%d, v%d, v%d' % (vT1, vT1, vXO))
    a('v_cvt_pk_bf16_f32 v%d, v%d, v%d' % (vT1, vT1, vT1))
    a('s_mov_b64 exec, 15')
    a('buffer_store_short v%d, v%d, %s, s%d offen' % (vT1, vA1, srd(sOUT), sT2))
    a('s_mov_b64 exec, -1')
    stamp(6)
    a.label('L_END')
    a('s_endpgm')
    a.raw('.section .rodata,"a"')
    for nm, nv, ns in (('%s_kernel' % NAME, NVGPR, 102),):
        a.raw('.p2align 6')
        a.raw('.amdhsa_kernel %s' % nm)
        a.raw('  .amdhsa_next_free_vgpr %d' % nv)
        a.raw('  .amdhsa_next_free_sgpr %d' % ns)
        a.raw('  .amdhsa_accum_offset %d' % ((nv + 3) // 4 * 4))
        a.raw('  .amdhsa_group_segment_fixed_size 0')
        a.raw('  .amdhsa_kernarg_size 96')
        a.raw('  .amdhsa_user_sgpr_count 2')
        a.raw('  .amdhsa_user_sgpr_kernarg_segment_ptr 1')
        a.raw('  .amdhsa_system_sgpr_workgroup_id_x 1')
        a.raw('  .amdhsa_float_denorm_mode_32 3')
        a.raw('.end_amdhsa_kernel')
    return a.text()


if __name__ == '__main__':
    ap = argparse.ArgumentParser()
    ap.add_argument('-o', default='cdna_kernels/%s.s' % NAME)
    ap.add_argument('--NS', type=int, default=6)
    ap.add_argument('--diag', action='store_true')
    ap.add_argument('--nownt', action='store_true')
    ap.add_argument('--R2', action='store_true')
    ap.add_argument('--cmap', type=int, default=0)
    args = ap.parse_args()
    open(args.o, 'w').write(gen(NS=args.NS, diag=args.diag, wnt=not args.nownt, R2=args.R2, cmap=args.cmap))
```

```python
import sys, argparse, struct
sys.path.insert(0, 'dev')
from asmlib import Asm

NAME = 'recurrent_scan__gqa_block_cached__swiglu_ffn__decode'

def f2u(x):
    return struct.unpack('<I', struct.pack('<f', x))[0]

LOG2E = f2u(1.4426950408889634)
SCALE = f2u(128 ** -0.5)
DPPM = 'row_mask:0xf bank_mask:0xf'

P_BASE = 0
PSTR = 13312 * 4
C_BASE = 0x38000
Y_BASE = 0x100000
Z_BASE = 0x200000
TS_BASE = 0x300000
O_BASE = 0x400000
WS_SIZE = 0x600000
HBUF, ZBUF, CBUF, MLBUF, RBUF, QBUF, WOBUF, LDS_SIZE = 0, 256, 9472, 13568, 13696, 13824, 17920, 43008
XBUF = 37888
NCH = 2048


class Ctx:
    pass


def gen(NS=24, diag=False, wnt=True, spin=1 << 16, R2=False, cmap=13, N1=1920, pre=2, extra=True, nocomp=False):
    a = Asm()
    NT = ' nt'
    WNT = ' nt' if wnt else ''

    def srd(n):
        return 's[%d:%d]' % (n, n + 3)

    def vr(n, k=4):
        return 'v[%d:%d]' % (n, n + k - 1)

    def rnd_hi(dst, src):
        a('v_cvt_pk_bf16_f32 v%d, v%d, v%d' % (dst, src, src))
        a('v_and_b32 v%d, 0xffff0000, v%d' % (dst, dst))

    def allreduce(reg, op, tmp, steps=(8, 4, 2, 1)):
        for s in steps:
            a('%s_dpp v%d, v%d, v%d row_ror:%d %s' % (op, reg, reg, reg, s, DPPM))
        for sw in ('v_permlane16_swap_b32', 'v_permlane32_swap_b32'):
            a('v_mov_b32 v%d, v%d' % (tmp, reg))
            a('%s v%d, v%d' % (sw, reg, tmp))
            a('%s v%d, v%d, v%d' % (op, reg, reg, tmp))

    def mk_srd(s, p, nrec, off_sgpr=None):
        if off_sgpr is None:
            a('s_mov_b32 s%d, s%d' % (s, p))
            a('s_mov_b32 s%d, s%d' % (s + 1, p + 1))
        else:
            a('s_add_u32 s%d, s%d, s%d' % (s, p, off_sgpr))
            a('s_addc_u32 s%d, s%d, 0' % (s + 1, p + 1))
        if nrec is not None:
            a('s_mov_b32 s%d, 0x%x' % (s + 2, nrec))
        a('s_mov_b32 s%d, 0x00020000' % (s + 3))

    pX, pK, pV, pWQ, pWO, pBX, pWG, pWU, pWD, pOUT, pDBG, pWS = [8 + 2 * i for i in range(12)]

    a.raw('; @launch grid=(256,1,1) block=(256,1,1) lds=%d' % LDS_SIZE)
    a.raw('.amdgcn_target "amdgcn-amd-amdhsa--gfx950"')
    a.raw('.text')
    vT, vL, vOFF, vAT = 0, 1, 2, 3
    qA, qB, MK, ACC = 4, 8, 12, 16
    vM, vLs = 20, 21
    X, Y, P2 = 22, 26, 30
    vAL, vT1 = 34, 35
    B0, B1 = 36, 40
    vT2, vT3, vT4, vZ = 44, 45, 46, 47
    RING = 48
    WREG = 112
    WD = 184
    GP = 208
    XQH, XQL, XFH, XFL, XR = 80, 90, 216, 226, 100
    vA1, vA2, vXO, vCLR, vS1, vS2, vNEG, vDUM = 236, 237, 238, 239, 240, 241, 242, 243
    NVGPR = 244
    AC = 22
    SLB = 80
    sK, sV, sX, sWD, sWO, sWS, sOUT, sA, sDBG = [32 + 4 * i for i in range(9)]
    sW, sT0, sT1, sT2, sOFFS, sNXT, sIT, sLOG2E, sSCALE, sSPIN, sKVH, sJ, sINB, sWID, sCNT, sREM, sBP = range(68, 85)
    sP = 8
    sTS, sM0, sT00 = 86, 88, 90
    G_OFF = 8
    S0 = 5
    assert NS - 1 > S0 + 3

    def stamp(k, src=None):
        if not diag:
            return
        if src is None:
            a('s_memrealtime s[%d:%d]' % (sTS, sTS + 1))
            a('s_waitcnt lgkmcnt(0)')
            src = sTS
        a('v_mov_b32 v%d, s%d' % (vS1, src))
        a('v_mov_b32 v%d, s%d' % (vS2, src + 1))
        a('s_lshl_b32 s%d, s2, 2' % sTS)
        a('s_add_u32 s%d, s%d, s%d' % (sTS, sTS, sW))
        a('s_lshl_b32 s%d, s%d, 7' % (sTS, sTS))
        a('s_add_u32 s%d, s%d, %d' % (sTS, sTS, TS_BASE + k * 8))
        a('s_mov_b64 s[%d:%d], exec' % (sM0, sM0 + 1))
        a('s_mov_b64 exec, 1')
        a('buffer_store_dwordx2 v[%d:%d], v%d, %s, s%d offen' % (vS1, vS2, vZ, srd(sWS), sTS))
        a('s_mov_b64 exec, s[%d:%d]' % (sM0, sM0 + 1))
        a.fence()

    def idmap(src):
        if cmap == 0:
            a('s_lshl_b32 s%d, s%d, 13' % (sNXT, src))
        elif cmap == 1:
            a('s_mul_i32 s%d, s%d, 137' % (sNXT, sKVH))
            a('s_add_u32 s%d, s%d, s%d' % (sNXT, sNXT, src))
            a('s_and_b32 s%d, s%d, 2047' % (sNXT, sNXT))
            a('s_lshl_b32 s%d, s%d, 13' % (sNXT, sNXT))
        elif cmap == 2:
            a('s_mul_i32 s%d, s%d, 1237' % (sNXT, src))
            a('s_and_b32 s%d, s%d, 2047' % (sNXT, sNXT))
            a('s_lshl_b32 s%d, s%d, 13' % (sNXT, sNXT))
        elif cmap == 3:
            a('s_and_b32 s%d, s%d, 15' % (sNXT, src))
            a('s_lshl_b32 s%d, s%d, 7' % (sNXT, sNXT))
            a('s_lshr_b32 s%d, s%d, 4' % (sT2, src))
            a('s_add_u32 s%d, s%d, s%d' % (sNXT, sNXT, sT2))
            a('s_lshl_b32 s%d, s%d, 13' % (sNXT, sNXT))
        elif cmap >= 10:
            sb = cmap % 10
            rot = (cmap // 10 - 1)
            a('s_and_b32 s%d, s%d, %d' % (sNXT, src, (1 << sb) - 1))
            a('s_lshl_b32 s%d, s%d, %d' % (sNXT, sNXT, 11 - sb))
            a('s_lshr_b32 s%d, s%d, %d' % (sT2, src, sb))
            a('s_add_u32 s%d, s%d, s%d' % (sNXT, sNXT, sT2))
            if rot:
                a('s_mul_i32 s%d, s%d, %d' % (sT2, sKVH, [0, 9, 37][rot]))
                a('s_add_u32 s%d, s%d, s%d' % (sNXT, sNXT, sT2))
                a('s_and_b32 s%d, s%d, 2047' % (sNXT, sNXT))
            a('s_lshl_b32 s%d, s%d, 13' % (sNXT, sNXT))

    def ring_load(base, isV, soff):
        for u in range(4):
            a('buffer_load_dwordx4 %s, v%d, %s, s%d offen offset:%d%s' % (vr(base + u * 4), vOFF, srd(sV if isV else sK), soff, u * 1024, NT))

    def kstep(base):
        if nocomp:
            return
        for d in range(4):
            for u in range(4):
                a('v_dot2_f32_bf16 v%d, v%d, v%d, %s' % (X + u, base + 4 * u + d, qA + d, ('v%d' % (X + u)) if d else '0'))
            for u in range(4):
                a('v_dot2_f32_bf16 v%d, v%d, v%d, %s' % (Y + u, base + 4 * u + d, qB + d, ('v%d' % (Y + u)) if d else '0'))

    def softmax_step():
        if nocomp:
            return
        for u in range(4):
            a('v_add_f32_dpp v%d, v%d, v%d row_ror:8 %s' % (X + u, Y + u, X + u, DPPM))
        for u in range(4):
            a('v_add_f32_dpp v%d, v%d, v%d row_half_mirror %s' % (X + u, X + u, X + u, DPPM))
        for u in range(4):
            a('v_add_f32_dpp v%d, v%d, v%d quad_perm:[1,0,3,2] %s' % (X + u, X + u, X + u, DPPM))
        for u in range(4):
            a('v_add_f32_dpp v%d, v%d, v%d quad_perm:[2,3,0,1] %s' % (X + u, X + u, X + u, DPPM))
        for pr in range(2):
            a('v_cvt_pk_bf16_f32 v%d, v%d, v%d' % (Y + pr, X + 2 * pr, X + 2 * pr + 1))
        for pr in range(2):
            a('v_lshlrev_b32 v%d, 16, v%d' % (X + 2 * pr, Y + pr))
            a('v_and_b32 v%d, 0xffff0000, v%d' % (X + 2 * pr + 1, Y + pr))
        for u in range(4):
            a('v_mul_f32 v%d, s%d, v%d' % (X + u, sSCALE, X + u))
        for pr in range(2):
            a('v_cvt_pk_bf16_f32 v%d, v%d, v%d' % (Y + pr, X + 2 * pr, X + 2 * pr + 1))
        for pr in range(2):
            a('v_lshlrev_b32 v%d, 16, v%d' % (X + 2 * pr, Y + pr))
            a('v_and_b32 v%d, 0xffff0000, v%d' % (X + 2 * pr + 1, Y + pr))
        a('v_max3_f32 v%d, v%d, v%d, v%d' % (vT1, X, X + 1, X + 2))
        a('v_max3_f32 v%d, v%d, v%d, v%d' % (vT1, vT1, X + 3, vM))
        for sw in ('v_permlane16_swap_b32', 'v_permlane32_swap_b32'):
            a('v_mov_b32 v%d, v%d' % (vT2, vT1))
            a('%s v%d, v%d' % (sw, vT1, vT2))
            a('v_max_f32 v%d, v%d, v%d' % (vT1, vT1, vT2))
        a('v_sub_f32 v%d, v%d, v%d' % (vAL, vM, vT1))
        a('v_mov_b32 v%d, v%d' % (vM, vT1))
        a('v_mul_f32 v%d, s%d, v%d' % (vAL, sLOG2E, vAL))
        a('v_mul_f32 v%d, s%d, v%d' % (vT1, sLOG2E, vT1))
        a('v_exp_f32 v%d, v%d' % (vAL, vAL))
        for u in range(4):
            a('v_fma_f32 v%d, v%d, s%d, -v%d' % (X + u, X + u, sLOG2E, vT1))
        for u in range(4):
            a('v_exp_f32 v%d, v%d' % (X + u, X + u))
        a('v_add_f32 v%d, v%d, v%d' % (vT1, X, X + 1))
        a('v_add_f32 v%d, v%d, v%d' % (vT2, X + 2, X + 3))
        for u in range(4):
            a('v_cvt_pk_bf16_f32 v%d, v%d, v%d' % (P2 + u, X + u, X + u))
        a('v_add_f32 v%d, v%d, v%d' % (vT1, vT1, vT2))
        a('v_fma_f32 v%d, v%d, v%d, v%d' % (vLs, vLs, vAL, vT1))
        for r in range(4):
            a('v_mul_f32 v%d, v%d, v%d' % (ACC + r, ACC + r, vAL))

    def vstep(base):
        if nocomp:
            return
        for u in range(4):
            Bx = B0 if u % 2 == 0 else B1
            for r in range(4):
                a('v_and_b32 v%d, v%d, v%d' % (Bx + r, P2 + u, MK + r))
            a('v_mfma_f32_16x16x32_bf16 %s, %s, %s, %s' % (vr(ACC), vr(base + 4 * u), vr(Bx), vr(ACC)))

    def body(base, loads, waits):
        for s in range(4):
            if waits[s] is not None:
                a('s_waitcnt vmcnt(%d)' % min(waits[s], 63))
            b = base + 16 * s
            soff = sNXT if s < 2 else sNX2
            if s % 2 == 0:
                kstep(b)
                if loads:
                    ring_load(b, False, soff)
                softmax_step()
            else:
                vstep(b)
                if loads:
                    ring_load(b, True, soff)

    a.raw('.globl %s_kernel' % NAME)
    a.raw('.p2align 8')
    a.raw('.type %s_kernel,@function' % NAME)
    a.label('%s_kernel' % NAME)
    a('s_cmp_ge_u32 s2, 256')
    a('s_cbranch_scc1 L_END')
    if diag:
        a('s_memrealtime s[%d:%d]' % (sT00, sT00 + 1))
    a('s_load_dwordx16 s[8:23], s[0:1], 0')
    a('s_load_dwordx8 s[24:31], s[0:1], 64')
    a('v_and_b32 v%d, 63, v0' % vL)
    a('v_lshrrev_b32 v%d, 6, v0' % vT1)
    a('v_readfirstlane_b32 s%d, v%d' % (sW, vT1))
    a('s_lshr_b32 s%d, s2, 4' % sKVH)
    a('s_and_b32 s%d, s2, 15' % sJ)
    a('s_lshl_b32 s%d, s%d, 2' % (sWID, sJ))
    a('s_add_u32 s%d, s%d, s%d' % (sWID, sWID, sW))
    a('s_lshl_b32 s%d, s%d, 4' % (sBP, sJ))
    a('s_add_u32 s%d, s%d, s%d' % (sBP, sBP, sKVH))
    a('s_mov_b32 s%d, 0x%08x' % (sLOG2E, LOG2E))
    a('s_mov_b32 s%d, 0x%08x' % (sSCALE, SCALE))
    a('s_lshl_b32 s%d, s%d, 8' % (sCNT, sKVH))
    a('s_add_u32 s%d, s%d, 0x%x' % (sCNT, sCNT, C_BASE))
    a('v_lshlrev_b32 v%d, 4, v%d' % (vOFF, vL))
    a('v_mov_b32 v%d, 0' % vZ)
    a('v_lshlrev_b32 v%d, 1, v%d' % (vT1, vL))
    a('v_lshrrev_b32 v%d, 4, v0' % vT4)
    a('v_and_b32 v%d, 15, v0' % vT3)
    a('v_lshlrev_b32 v%d, 3, v%d' % (vT3, vT3))
    a('s_lshr_b32 s%d, s%d, 2' % (sT0, sJ))
    a('s_mul_i32 s%d, s%d, 144' % (sT0, sT0))
    a('v_add_u32 v%d, s%d, v%d' % (vT2, sT0, vT4))
    a('v_lshl_add_u32 v%d, v%d, 13, v%d' % (vA1, vT2, vT3))
    a('v_lshlrev_b32 v%d, 1, v%d' % (vT2, vT2))
    a('s_and_b32 s%d, s%d, 3' % (sT0, sKVH))
    a('s_mul_i32 s%d, s%d, 144' % (sT0, sT0))
    a('v_add_u32 v%d, s%d, v%d' % (vT4, sT0, vT4))
    a('v_mul_u32_u24 v%d, 9216, v%d' % (vA2, vT4))
    a('v_add_u32 v%d, v%d, v%d' % (vA2, vA2, vT3))
    a('v_lshlrev_b32 v%d, 1, v%d' % (vT4, vT4))
    a('s_lshl_b32 s%d, s%d, 9' % (sOFFS, sKVH))
    a('s_and_b32 s%d, s%d, 3' % (sT0, sJ))
    a('s_lshl_b32 s%d, s%d, 7' % (sT0, sT0))
    a('s_add_u32 s%d, s%d, s%d' % (sOFFS, sOFFS, sT0))
    idmap(sWID)
    a('s_waitcnt lgkmcnt(0)')
    if diag:
        a('s_memrealtime s[92:93]')
    mk_srd(sX, pX, 1152)
    mk_srd(sA, pWQ, 576 * 8192)
    a('s_mul_i32 s%d, s%d, 1280' % (sT0, sW))
    a('s_add_u32 s%d, s%d, %d' % (sT0, sT0, XBUF))
    a('s_mov_b32 m0, s%d' % sT0)
    a('s_nop 0')
    a.raw('    buffer_load_dwordx4 v%d, %s, 0 offen lds' % (vOFF, srd(sX)))
    a('s_mov_b64 exec, 0xff')
    a.raw('    buffer_load_dwordx4 v%d, %s, 0 offen offset:1024 lds' % (vOFF, srd(sX)))
    a('s_mov_b64 exec, -1')
    for i in range(9):
        a('buffer_load_dwordx2 v[%d:%d], v%d, %s, s%d offen%s' % (WREG + 2 * i, WREG + 2 * i + 1, vA1, srd(sA), sOFFS, WNT))
        if i < 8:
            a('s_add_u32 s%d, s%d, %d' % (sOFFS, sOFFS, 16 * 8192))
    a('v_add_u32 v%d, s%d, v%d' % (vT1, sT0, vT1))
    a('v_add_u32 v%d, s%d, v%d' % (vT2, sT0, vT2))
    a('v_add_u32 v%d, s%d, v%d' % (vT4, sT0, vT4))
    a('s_lshl_b32 s%d, s%d, 24' % (sT0, sKVH))
    mk_srd(sK, pK, 1 << 24, sT0)
    mk_srd(sV, pV, 1 << 24, sT0)
    mk_srd(sWS, pWS, WS_SIZE)
    mk_srd(sDBG, pDBG, 256)
    mk_srd(sOUT, pOUT, 1152)
    mk_srd(sWO, pWO, 4096 * 1152)
    mk_srd(sWD, pWD, 4608 * 1152)

    def unit_loads(u):
        a('s_add_u32 s%d, s%d, %d' % (sT0, sBP, 256 * u))
        a('s_lshr_b32 s%d, s%d, 2' % (sT0, sT0))
        a('s_sub_u32 s%d, s%d, 72' % (sT1, sT0))
        a('s_cmp_lt_u32 s%d, 72' % sT0)
        a('s_cselect_b32 s%d, s%d, s%d' % (sA, pWG, pWU))
        a('s_cselect_b32 s%d, s%d, s%d' % (sA + 1, pWG + 1, pWU + 1))
        a('s_cselect_b32 s%d, s%d, s%d' % (sT1, sT0, sT1))
        a('s_lshl_b32 s%d, s%d, 7' % (sOFFS, sT1))
        a('s_cmp_lt_u32 s%d, 144' % sT0)
        a('s_cselect_b32 s%d, 0x%x, 0' % (sA + 2, 576 * 9216))
        for i in range(9):
            r = WREG + 18 + 18 * u + 2 * i
            a('buffer_load_dwordx2 v[%d:%d], v%d, %s, s%d offen%s' % (r, r + 1, vA2, srd(sA), sOFFS, WNT))
            if i < 8:
                a('s_add_u32 s%d, s%d, %d' % (sOFFS, sOFFS, 16 * 9216))

    def wd_loads():
        a('v_mul_u32_u24 v%d, 911, v0' % vA1)
        a('v_lshrrev_b32 v%d, 16, v%d' % (vA1, vA1))
        a('v_mul_u32_u24 v%d, 72, v%d' % (vA2, vA1))
        a('v_sub_u32 v%d, v0, v%d' % (vA2, vA2))
        a('v_mul_u32_u24 v%d, %d, v%d' % (vT2, 6 * 1152, vA1))
        a('v_lshl_add_u32 v%d, v%d, 4, v%d' % (vT2, vA2, vT2))
        a('v_cmp_gt_u32 vcc, 216, v0')
        a('v_cndmask_b32 v%d, -16, v%d, vcc' % (vT2, vT2))
        a('s_mul_i32 s%d, s2, %d' % (sOFFS, 18 * 1152))
        a('s_add_u32 s%d, s%d, 3456' % (sT0, sOFFS))
        for i in range(6):
            a('buffer_load_dwordx4 %s, v%d, %s, s%d offen offset:%d%s' % (vr(WD + 4 * i), vT2, srd(sWD), sOFFS if i < 3 else sT0, (i % 3) * 1152, WNT))

    def wo_dma():
        a('s_mul_i32 s%d, s%d, 5120' % (sT0, sW))
        a('s_mul_i32 s%d, s2, %d' % (sOFFS, 16 * 1152))
        a('s_add_u32 s%d, s%d, s%d' % (sOFFS, sOFFS, sT0))
        a('s_add_u32 s%d, s%d, %d' % (sT0, sT0, WOBUF))
        a('s_mov_b32 m0, s%d' % sT0)
        a('s_nop 0')
        for i in range(3):
            a.raw('    buffer_load_dwordx4 v%d, %s, s%d offen offset:%d%s lds' % (vOFF, srd(sWO), sOFFS, i * 1024, WNT))
        l = a.newlabel('L_WO')
        a('s_cmp_eq_u32 s%d, 3' % sW)
        a('s_cbranch_scc1 %s' % l)
        a('s_add_u32 s%d, s%d, 3072' % (sOFFS, sOFFS))
        a('s_add_u32 s%d, s%d, 3072' % (sT0, sT0))
        a('s_mov_b32 m0, s%d' % sT0)
        a('s_nop 0')
        for i in range(2):
            a.raw('    buffer_load_dwordx4 v%d, %s, s%d offen offset:%d%s lds' % (vOFF, srd(sWO), sOFFS, i * 1024, WNT))
        a.label(l)

    def two_way_wait(n0, n1):
        l0, l1 = a.newlabel('W0'), a.newlabel('W1')
        a('s_cmp_eq_u32 s%d, 0' % sW)
        a('s_cbranch_scc1 %s' % l0)
        a('s_waitcnt vmcnt(%d)' % n1)
        a('s_branch %s' % l1)
        a.label(l0)
        a('s_waitcnt vmcnt(%d)' % n0)
        a.label(l1)

    a('s_cmp_eq_u32 s%d, 0' % sW)
    a('s_cbranch_scc1 L_NOBULK')
    ring_load(RING, False, sNXT)
    ring_load(RING + 16, True, sNXT)
    for u in range(pre):
        unit_loads(u)
    nbulk = 8 + 9 * pre
    a.label('L_NOBULK')
    if diag:
        a('s_memrealtime s[100:101]')
    two_way_wait(9, 9 + nbulk)
    for i in range(9):
        a('ds_read_u16 v%d, v%d offset:%d' % (XR + i, vT1, i * 128))
    for i in range(9):
        a('ds_read_u16 v%d, v%d offset:%d' % (XQH + i, vT2, i * 32))
    for i in range(9):
        a('ds_read_u16 v%d, v%d offset:%d' % (XFH + i, vT4, i * 32))
    a('v_and_b32 v%d, 15, v%d' % (vT4, vL))
    a('v_lshlrev_b32 v%d, 4, v%d' % (vT4, vT4))
    a('v_and_b32 v%d, 16, v%d' % (vT3, vL))
    a('v_lshrrev_b32 v%d, 1, v%d' % (vT3, vT3))
    a('v_add_u32 v%d, v%d, v%d' % (vT4, vT4, vT3))
    a('v_and_b32 v%d, 32, v%d' % (vT3, vL))
    a('v_lshrrev_b32 v%d, 3, v%d' % (vT3, vT3))
    a('v_add_u32 v%d, v%d, v%d' % (vT4, vT4, vT3))
    a('s_lshl_b32 s%d, s%d, 8' % (sT0, sW))
    a('v_add_u32 v%d, s%d, v%d' % (vT4, sT0, vT4))

    def ln_apply(H, L, n):
        for i in range(n):
            a('v_lshlrev_b32 v%d, 16, v%d' % (H + i, H + i))
            a('v_sub_f32 v%d, v%d, v%d' % (H + i, H + i, vT1))
            rnd_hi(H + i, H + i)
            a('v_mul_f32 v%d, v%d, v%d' % (L + i, H + i, vLs))
            a('v_fma_f32 v%d, -v%d, v%d, v%d' % (H + i, L + i, vM, H + i))
            a('v_fmac_f32 v%d, v%d, v%d' % (L + i, H + i, vLs))
            a('v_cvt_pk_bf16_f32 v%d, v%d, v%d' % (L + i, L + i, L + i))
            a('v_and_b32 v%d, 0xffff0000, v%d' % (H + i, L + i))
            a('v_and_b32 v%d, 0xffff, v%d' % (L + i, L + i))

    def unit_gemv(wb, H, L, ldsoff):
        for i in range(9):
            for c in range(4):
                a('v_dot2_f32_bf16 v%d, v%d, v%d, %s' % (AC + c, wb + 2 * i + (c >> 1), (H if c & 1 else L) + i, ('v%d' % (AC + c)) if i else '0'))
        for k in range(2):
            a('v_permlane32_swap_b32 v%d, v%d' % (AC + 2 * k, AC + 2 * k + 1))
        for k in range(2):
            a('v_add_f32 v%d, v%d, v%d' % (AC + 2 * k, AC + 2 * k, AC + 2 * k + 1))
        a('v_permlane16_swap_b32 v%d, v%d' % (AC, AC + 2))
        a('v_add_f32 v%d, v%d, v%d' % (AC, AC, AC + 2))
        a('ds_write_b32 v%d, v%d offset:%d' % (vT4, AC, ldsoff))

    a('s_waitcnt lgkmcnt(0)')
    if diag:
        a('s_memrealtime s[94:95]')
    for i in range(9):
        a('v_lshlrev_b32 v%d, 16, v%d' % (XR + i, XR + i))
    a('v_add_f32 v%d, v%d, v%d' % (vT1, XR, XR + 1))
    for i in range(2, 9):
        a('v_add_f32 v%d, v%d, v%d' % (vT1, vT1, XR + i))
    allreduce(vT1, 'v_add_f32', vAL)
    a('v_mul_f32 v%d, 0x%08x, v%d' % (vT1, f2u(1.0 / 576), vT1))
    a('v_sub_f32 v%d, v%d, v%d' % (XR, XR, vT1))
    a('v_mul_f32 v%d, v%d, v%d' % (vM, XR, XR))
    for i in range(1, 9):
        a('v_sub_f32 v%d, v%d, v%d' % (XR + i, XR + i, vT1))
        a('v_fmac_f32 v%d, v%d, v%d' % (vM, XR + i, XR + i))
    allreduce(vM, 'v_add_f32', vAL)
    a('v_mul_f32 v%d, 0x%08x, v%d' % (vM, f2u(1.0 / 576), vM))
    rnd_hi(vT1, vT1)
    rnd_hi(vM, vM)
    a('v_add_f32 v%d, 0x%08x, v%d' % (vM, f2u(1e-5), vM))
    rnd_hi(vM, vM)
    a('v_sqrt_f32 v%d, v%d' % (vM, vM))
    rnd_hi(vM, vM)
    a('v_rcp_f32 v%d, v%d' % (vLs, vM))
    ln_apply(XQH, XQL, 9)
    a.fence()
    two_way_wait(0, nbulk)
    if diag:
        a('s_memrealtime s[96:97]')
    unit_gemv(WREG, XQH, XQL, CBUF)
    a('s_waitcnt lgkmcnt(0)')
    a('s_barrier')
    if diag:
        a('s_memrealtime s[98:99]')
    a('s_cmp_lg_u32 s%d, 0' % sW)
    a('s_cbranch_scc1 L_QP')
    a('v_lshlrev_b32 v%d, 2, v%d' % (vT3, vL))
    for w in range(4):
        a('ds_read_b32 v%d, v%d offset:%d' % (AC + w, vT3, CBUF + w * 256))
    a('s_lshr_b32 s%d, s%d, 2' % (sT1, sJ))
    a('s_mul_i32 s%d, s%d, %d' % (sT1, sT1, PSTR))
    a('s_lshl_b32 s%d, s%d, 10' % (sT0, sKVH))
    a('s_add_u32 s%d, s%d, s%d' % (sT1, sT1, sT0))
    a('s_and_b32 s%d, s%d, 3' % (sT0, sJ))
    a('s_lshl_b32 s%d, s%d, 8' % (sT0, sT0))
    a('s_add_u32 s%d, s%d, s%d' % (sT1, sT1, sT0))
    a('s_waitcnt lgkmcnt(0)')
    a('v_add_f32 v%d, v%d, v%d' % (AC, AC, AC + 1))
    a('v_add_f32 v%d, v%d, v%d' % (AC + 2, AC + 2, AC + 3))
    a('v_add_f32 v%d, v%d, v%d' % (AC, AC, AC + 2))
    a('buffer_store_dword v%d, v%d, %s, s%d offen sc1' % (AC, vT3, srd(sWS), sT1))
    a('s_lshl_b32 s%d, s%d, 4' % (sT0, sKVH))
    a('v_mov_b32 v%d, 1' % vT3)
    a('s_waitcnt vmcnt(0)')
    a('s_mov_b64 exec, 1')
    a('buffer_atomic_add v%d, v%d, %s, s%d offen' % (vT3, vZ, srd(sDBG), sT0))
    a('s_mov_b64 exec, -1')
    stamp(1)
    ring_load(RING, False, sNXT)
    ring_load(RING + 16, True, sNXT)
    for u in range(pre):
        unit_loads(u)
    a.fence()
    a('s_branch L_QP2')
    a.label('L_QP')
    a('s_cmp_lg_u32 s%d, 1' % sW)
    a('s_cbranch_scc1 L_QP2')
    for k in range(4):
        a('v_mov_b32 v%d, -1' % (B1 + k))
    a('s_lshl_b32 s%d, s2, 13' % sT0)
    a('s_add_u32 s%d, s%d, 0x%x' % (sT0, sT0, O_BASE))
    for k in range(4):
        a('buffer_store_dwordx4 %s, v%d, %s, s%d offen offset:%d sc1' % (vr(B1), vOFF, srd(sWS), sT0, k * 1024))
    a('s_add_u32 s%d, s%d, 4096' % (sT0, sT0))
    a('buffer_store_dwordx4 %s, v%d, %s, s%d offen sc1' % (vr(B1), vOFF, srd(sWS), sT0))
    a('s_cmp_lg_u32 s%d, 0' % sJ)
    a('s_cbranch_scc1 L_NOCNT')
    a('s_mov_b64 exec, 1')
    a('buffer_store_dword v%d, v%d, %s, s%d offen sc1' % (vZ, vZ, srd(sWS), sCNT))
    a('s_mov_b64 exec, -1')
    a.label('L_NOCNT')
    a('s_cmp_ge_u32 s2, 144')
    a('s_cbranch_scc1 L_QP2')
    a('s_lshl_b32 s%d, s2, 12' % sT0)
    a('s_add_u32 s%d, s%d, 0x%x' % (sT0, sT0, Y_BASE))
    a('s_add_u32 s%d, s%d, 0x%x' % (sT1, sT0, Z_BASE - Y_BASE))
    for k in range(4):
        a('buffer_store_dwordx4 %s, v%d, %s, s%d offen offset:%d sc1' % (vr(B1), vOFF, srd(sWS), sT0, k * 1024))
    for k in range(4):
        a('buffer_store_dwordx4 %s, v%d, %s, s%d offen offset:%d sc1' % (vr(B1), vOFF, srd(sWS), sT1, k * 1024))
    a.label('L_QP2')
    for u in range(pre, 3):
        unit_loads(u)
    ln_apply(XFH, XFL, 9)
    wd_loads()
    wo_dma()
    a('s_add_u32 s%d, s%d, 4096' % (sINB, sNXT))
    for u in range(3):
        a('s_waitcnt vmcnt(%d)' % (9 + 9 * (2 - u)))
        if extra and u == 2:
            a('s_cmp_eq_u32 s%d, 0' % sW)
            a('s_cbranch_scc1 L_NOSLB')
            ring_load(SLB, False, sINB)
            ring_load(SLB + 16, True, sINB)
            a.label('L_NOSLB')
        unit_gemv(WREG + 18 + 18 * u, XFH, XFL, CBUF + 1024 * (u + 1))
    stamp(0, sT00)
    if diag:
        a('s_waitcnt lgkmcnt(0)')
    stamp(9, 92)
    stamp(10, 94)
    stamp(11, 96)
    stamp(14, 98)
    stamp(12, 100)
    stamp(15)
    a('s_cmp_lg_u32 s%d, 0' % sW)
    a('s_cbranch_scc1 L_WQ')
    a('s_lshl_b32 s%d, s%d, 10' % (sT1, sKVH))
    a('s_lshl_b32 s%d, s%d, 4' % (sT0, sKVH))
    a('s_mov_b32 s%d, %d' % (sSPIN, spin))
    a.fence()
    a.label('L_QPOLL')
    a('buffer_load_dword v%d, v%d, %s, s%d offen sc1' % (vT3, vZ, srd(sDBG), sT0))
    a('s_waitcnt vmcnt(0)')
    a('v_readfirstlane_b32 s%d, v%d' % (sT2, vT3))
    a('s_sub_u32 s%d, s%d, 1' % (sSPIN, sSPIN))
    a('s_cbranch_scc1 L_QGO')
    a('s_cmp_ge_u32 s%d, 16' % sT2)
    a('s_cbranch_scc0 L_QPOLL')
    a.label('L_QGO')
    for r in range(4):
        a('buffer_load_dwordx4 %s, v%d, %s, s%d offen sc1' % (vr(WREG + 4 * r), vOFF, srd(sWS), sT1))
        if r < 3:
            a('s_add_u32 s%d, s%d, %d' % (sT1, sT1, PSTR))
    stamp(13)
    if extra:
        ring_load(SLB, False, sINB)
        ring_load(SLB + 16, True, sINB)
    a('v_lshlrev_b32 v%d, 3, v%d' % (vT1, vL))
    a('s_waitcnt vmcnt(%d)' % ((1 if diag else 0) + (8 if extra else 0)))
    for k in range(4):
        a('v_add_f32 v%d, v%d, v%d' % (WREG + k, WREG + k, WREG + 4 + k))
        a('v_add_f32 v%d, v%d, v%d' % (WREG + 8 + k, WREG + 8 + k, WREG + 12 + k))
        a('v_add_f32 v%d, v%d, v%d' % (WREG + k, WREG + k, WREG + 8 + k))
    a('v_cvt_pk_bf16_f32 v%d, v%d, v%d' % (WREG, WREG, WREG + 1))
    a('v_cvt_pk_bf16_f32 v%d, v%d, v%d' % (WREG + 1, WREG + 2, WREG + 3))
    a('ds_write_b64 v%d, v[%d:%d] offset:%d' % (vT1, WREG, WREG + 1, QBUF))
    a.fence()
    a.label('L_WQ')
    a('v_and_b32 v%d, 7, v%d' % (vT1, vL))
    a('v_lshrrev_b32 v%d, 1, v%d' % (vT2, vT1))
    a('v_and_b32 v%d, 1, v%d' % (vT3, vT1))
    a('v_lshlrev_b32 v%d, 4, v%d' % (vT3, vT3))
    a('v_mov_b32 v%d, 0xffff' % vT4)
    a('v_lshlrev_b32 v%d, v%d, v%d' % (vT4, vT3, vT4))
    for r in range(4):
        a('v_cmp_eq_u32 vcc, %d, v%d' % (r, vT2))
        a('v_cndmask_b32 v%d, 0, v%d, vcc' % (MK + r, vT4))
    for r in range(4):
        a('v_mov_b32 v%d, 0' % (ACC + r))
    a('v_mov_b32 v%d, 0xff800000' % vM)
    a('v_mov_b32 v%d, 0' % vLs)
    a('s_sub_u32 s%d, s%d, 64' % (sT0, sWID))
    a('v_mov_b32 v%d, s%d' % (vAT, sT0))
    a('v_and_b32 v%d, 15, v%d' % (vT1, vL))
    a('v_lshlrev_b32 v%d, 4, v%d' % (vT1, vT1))
    a('v_and_b32 v%d, 8, v%d' % (vT2, vL))
    a('v_lshl_add_u32 v%d, v%d, 5, v%d' % (vT1, vT2, vT1))
    a('v_xor_b32 v%d, 256, v%d' % (vT2, vT1))
    a('s_waitcnt lgkmcnt(0)')
    a('s_barrier')
    a('ds_read_b128 %s, v%d offset:%d' % (vr(qA), vT1, QBUF))
    a('ds_read_b128 %s, v%d offset:%d' % (vr(qB), vT2, QBUF))
    a('s_cmp_lg_u32 s%d, 1' % sW)
    a('s_cbranch_scc1 L_NOPUB')
    a('v_lshlrev_b32 v%d, 2, v%d' % (vT3, vL))
    for u in range(3):
        for w in range(4):
            a('ds_read_b32 v%d, v%d offset:%d' % (WREG + 4 * u + w, vT3, CBUF + 1024 * (u + 1) + w * 256))
    a('s_and_b32 s%d, s%d, 3' % (sT1, sKVH))
    a('s_mul_i32 s%d, s%d, %d' % (sT1, sT1, PSTR))
    a('s_lshr_b32 s%d, s%d, 2' % (sT0, sBP))
    a('s_lshl_b32 s%d, s%d, 8' % (sT0, sT0))
    a('s_add_u32 s%d, s%d, s%d' % (sT1, sT1, sT0))
    a('s_add_u32 s%d, s%d, %d' % (sT1, sT1, 4096 * 4))
    a('s_waitcnt lgkmcnt(0)')
    for u in range(3):
        r = WREG + 4 * u
        a('v_add_f32 v%d, v%d, v%d' % (r, r, r + 1))
        a('v_add_f32 v%d, v%d, v%d' % (r + 2, r + 2, r + 3))
        a('v_add_f32 v%d, v%d, v%d' % (r, r, r + 2))
        if u == 2:
            a('s_cmp_ge_u32 s%d, 64' % sBP)
            a('s_cbranch_scc1 L_NOPUB')
        a('buffer_store_dword v%d, v%d, %s, s%d offen sc1' % (r, vT3, srd(sWS), sT1))
        a('s_add_u32 s%d, s%d, %d' % (sT1, sT1, 64 * 256))
    a.label('L_NOPUB')
    a('s_waitcnt lgkmcnt(0)')
    stamp(2)

    def half(soff, w0, w1, loads=True, base=RING):
        if w0 is not None:
            a('s_waitcnt vmcnt(%d)' % w0)
        kstep(base)
        if loads:
            ring_load(base, False, soff)
        softmax_step()
        if w1 is not None:
            a('s_waitcnt vmcnt(%d)' % w1)
        vstep(base + 16)
        if loads:
            ring_load(base + 16, True, soff)
    a('v_mov_b32 v%d, -16' % vNEG)
    if extra:
        a('s_add_u32 s%d, s%d, 64' % (sT0, sWID))
        idmap(sT0)
        half(sNXT, None, None)
        half(None, 12, 8, loads=False, base=SLB)
        a('s_mov_b32 s%d, 1' % sIT)
    else:
        a('s_mov_b32 s%d, 0' % sIT)
    a('s_mov_b32 s%d, 1' % sREM)
    a.fence()
    a.raw('.p2align 6')
    a.label('L_LOOP')
    a('s_waitcnt vmcnt(4)')
    a('s_cmp_eq_u32 s%d, 0' % sREM)
    a('s_cbranch_scc1 L_NEWID')
    a('s_add_u32 s%d, s%d, 4096' % (sNXT, sNXT))
    a('s_mov_b32 s%d, 0' % sREM)
    a.label('L_GODUM')
    a('buffer_load_dword v%d, v%d, %s, 0 offen' % (vDUM, vNEG, srd(sWS)))
    a.label('L_GO')
    half(sNXT, None, 5)
    a.fence()
    a('s_branch L_LOOP')
    a.label('L_NEWID')
    if diag:
        a('s_memrealtime s[%d:%d]' % (sTS, sTS + 1))
        a('s_waitcnt lgkmcnt(0)')
        a('v_mov_b32 v%d, s%d' % (vS1, sTS))
        a('v_mov_b32 v%d, s%d' % (vS2, sTS + 1))
        a('s_lshl_b32 s%d, s2, 2' % sTS)
        a('s_add_u32 s%d, s%d, s%d' % (sTS, sTS, sW))
        a('s_lshl_b32 s%d, s%d, 6' % (sTS, sTS))
        a('s_add_u32 s%d, s%d, s%d' % (sTS, sTS, sIT))
        a('s_lshl_b32 s%d, s%d, 3' % (sTS, sTS))
        a('s_add_u32 s%d, s%d, 0x%x' % (sTS, sTS, 0x340000))
        a('s_mov_b64 exec, 1')
        a('buffer_store_dwordx2 v[%d:%d], v%d, %s, s%d offen' % (vS1, vS2, vZ, srd(sWS), sTS))
        a('s_mov_b64 exec, -1')
    a('s_add_u32 s%d, s%d, 1' % (sIT, sIT))
    a('s_cmp_lt_u32 s%d, %d' % (sIT, NS - 1))
    a('s_cbranch_scc1 L_SPECIAL')
    a.label('L_DYN')
    a('v_readfirstlane_b32 s%d, v%d' % (sT0, vAT))
    a('s_add_u32 s%d, s%d, %d' % (sT0, sT0, NS * 64))
    a('s_cmp_ge_u32 s%d, %d' % (sT0, N1))
    a('s_cbranch_scc1 L_SMALL')
    a('s_mov_b32 s%d, 1' % sREM)
    idmap(sT0)
    a.label('L_ATOM')
    a('v_mov_b32 v%d, 1' % vAT)
    a('s_mov_b64 exec, 1')
    a('buffer_atomic_add v%d, v%d, %s, s%d offen sc0' % (vAT, vZ, srd(sWS), sCNT))
    a('s_mov_b64 exec, -1')
    a('s_branch L_GO')
    a.label('L_SMALL')
    a('s_sub_u32 s%d, s%d, %d' % (sT1, sT0, N1))
    a('s_lshr_b32 s%d, s%d, 1' % (sT0, sT1))
    a('s_add_u32 s%d, s%d, %d' % (sT0, sT0, N1))
    a('s_cmp_ge_u32 s%d, %d' % (sT0, NCH))
    a('s_cbranch_scc1 L_LAST')
    idmap(sT0)
    a('s_and_b32 s%d, s%d, 1' % (sT1, sT1))
    a('s_lshl_b32 s%d, s%d, 12' % (sT1, sT1))
    a('s_add_u32 s%d, s%d, s%d' % (sNXT, sNXT, sT1))
    a('s_branch L_ATOM')
    a.label('L_SPECIAL')
    a('s_cmp_gt_u32 s%d, %d' % (sIT, S0 + 3))
    a('s_cbranch_scc1 L_SP_ST')
    a('s_cmp_eq_u32 s%d, %d' % (sIT, S0 + 3))
    a('s_cbranch_scc1 L_SP_BAR')
    a('s_cmp_eq_u32 s%d, %d' % (sIT, S0 + 2))
    a('s_cbranch_scc1 L_SP_FFN')
    a('s_cmp_eq_u32 s%d, %d' % (sIT, S0 + 1))
    a('s_cbranch_scc1 L_SP_VER')
    a('s_cmp_lg_u32 s%d, %d' % (sIT, S0))
    a('s_cbranch_scc1 L_SP_1')
    a('buffer_load_dword v%d, v%d, %s, 0 offen offset:%d sc1' % (vCLR, vZ, srd(sDBG), G_OFF))
    a.label('L_SP_1')
    a('s_cmp_lg_u32 s%d, 2' % sIT)
    a('s_cbranch_scc1 L_SP_ST')
    a('s_cmp_lg_u32 s%d, 1' % sW)
    a('s_cbranch_scc1 L_SP_ST')
    a('v_mov_b32 v%d, 1' % vT3)
    a('s_mov_b64 exec, 1')
    a('buffer_atomic_add v%d, v%d, %s, 0 offen offset:%d' % (vT3, vZ, srd(sDBG), G_OFF))
    a('s_mov_b64 exec, -1')
    a.label('L_SP_ST')
    a('s_lshl_b32 s%d, s%d, 6' % (sT0, sIT))
    a('s_add_u32 s%d, s%d, s%d' % (sT0, sT0, sWID))
    idmap(sT0)
    a('s_mov_b32 s%d, 1' % sREM)
    a.fence()
    a('s_branch L_GODUM')
    a.label('L_SP_VER')
    a('v_readfirstlane_b32 s%d, v%d' % (sT2, vCLR))
    a('s_mov_b32 s%d, %d' % (sSPIN, spin))
    a('s_cmp_ge_u32 s%d, 256' % sT2)
    a('s_cbranch_scc1 L_SP_OK')
    a.label('L_GPOLL')
    a('buffer_load_dword v%d, v%d, %s, 0 offen offset:%d sc1' % (vCLR, vZ, srd(sDBG), G_OFF))
    a('s_waitcnt vmcnt(0)')
    a('v_readfirstlane_b32 s%d, v%d' % (sT2, vCLR))
    a('s_sub_u32 s%d, s%d, 1' % (sSPIN, sSPIN))
    a('s_cbranch_scc1 L_SP_OK')
    a('s_cmp_ge_u32 s%d, 256' % sT2)
    a('s_cbranch_scc0 L_GPOLL')
    a.label('L_SP_OK')
    a('s_mul_i32 s%d, s2, 72' % sT0)
    a('s_add_u32 s%d, s%d, %d' % (sT0, sT0, 4096 * 4))
    a('v_lshlrev_b32 v%d, 2, v%d' % (vT1, vL))
    for r in range(4):
        a('buffer_load_dword v%d, v%d, %s, s%d offen sc1' % (GP + r, vT1, srd(sWS), sT0))
        a('s_add_u32 s%d, s%d, %d' % (sT1, sT0, 4608 * 4))
        a('buffer_load_dword v%d, v%d, %s, s%d offen sc1' % (GP + 4 + r, vT1, srd(sWS), sT1))
        if r < 3:
            a('s_add_u32 s%d, s%d, %d' % (sT0, sT0, PSTR))
    a.fence()
    a('s_branch L_SP_ST')
    a.label('L_SP_FFN')
    for b in (GP, GP + 4):
        a('v_add_f32 v%d, v%d, v%d' % (b, b, b + 1))
        a('v_add_f32 v%d, v%d, v%d' % (b + 2, b + 2, b + 3))
        a('v_add_f32 v%d, v%d, v%d' % (b, b, b + 2))
        rnd_hi(b, b)
    a('v_mul_f32 v%d, s%d, v%d' % (GP + 1, sLOG2E, GP))
    a('v_exp_f32 v%d, -v%d' % (GP + 1, GP + 1))
    a('v_add_f32 v%d, 1.0, v%d' % (GP + 1, GP + 1))
    a('v_rcp_f32 v%d, v%d' % (GP + 1, GP + 1))
    a('v_mul_f32 v%d, v%d, v%d' % (GP + 1, GP + 1, GP))
    rnd_hi(GP + 1, GP + 1)
    a('v_mul_f32 v%d, v%d, v%d' % (GP + 1, GP + 1, GP + 4))
    rnd_hi(GP + 1, GP + 1)
    a('v_mul_u32_u24 v%d, 24, v%d' % (vT1, vA1))
    HH, HL = WREG + 40, WREG + 48
    for i in range(6):
        a('v_add_u32 v%d, %d, v%d' % (vT2, 4 * i, vT1))
        a('ds_bpermute_b32 v%d, v%d, v%d' % (HH + i, vT2, GP + 1))
    a('v_mul_u32_u24 v%d, 2304, v%d' % (vT1, vA1))
    a('v_lshl_add_u32 v%d, v%d, 5, v%d' % (vT1, vA2, vT1))
    a('s_waitcnt lgkmcnt(0)')
    for i in range(6):
        a('v_lshrrev_b32 v%d, 16, v%d' % (HL + i, HH + i))
    for i in range(6):
        for c in range(8):
            a('v_dot2_f32_bf16 v%d, v%d, v%d, %s' % (B0 + c, WD + 4 * i + (c >> 1), (HH if c & 1 else HL) + i, ('v%d' % (B0 + c)) if i else '0'))
    a('ds_write_b128 v%d, %s offset:%d' % (vT1, vr(B0), ZBUF))
    a('ds_write_b128 v%d, %s offset:%d' % (vT1, vr(B0 + 4), ZBUF + 16))
    a.fence()
    a('s_branch L_SP_ST')
    a.label('L_SP_BAR')
    a('s_waitcnt lgkmcnt(0)')
    a('s_barrier')
    a('s_cmp_eq_u32 s%d, 0' % sW)
    a('s_cbranch_scc1 L_SP_WO')
    ZT = WD
    a('v_subrev_u32 v%d, 112, v0' % vT1)
    a('v_lshlrev_b32 v%d, 4, v%d' % (vT2, vT1))
    a('v_cmp_gt_u32 vcc, 144, v%d' % vT1)
    a('s_and_saveexec_b64 s[%d:%d], vcc' % (sM0, sM0 + 1))
    for g in range(3):
        a('ds_read_b128 %s, v%d offset:%d' % (vr(ZT + 4 * g), vT2, ZBUF + g * 2304))
    a('v_lshlrev_b32 v%d, 12, v%d' % (vT1, vT1))
    a('s_lshl_b32 s%d, s2, 4' % sT0)
    a('s_add_u32 s%d, s%d, 0x%x' % (sT0, sT0, Z_BASE))
    a('s_waitcnt lgkmcnt(0)')
    for k in range(4):
        a('v_add_f32 v%d, v%d, v%d' % (ZT + k, ZT + k, ZT + 4 + k))
        a('v_add_f32 v%d, v%d, v%d' % (ZT + k, ZT + k, ZT + 8 + k))
        a('v_min_u32 v%d, -2, v%d' % (ZT + k, ZT + k))
    a('buffer_store_dwordx4 %s, v%d, %s, s%d offen sc1' % (vr(ZT), vT1, srd(sWS), sT0))
    a('s_mov_b64 exec, -1')
    a.fence()
    a('s_cmp_ge_u32 s%d, 2' % sW)
    a('s_cbranch_scc1 L_SP_ST')
    a.label('L_SP_WO')
    a('v_lshlrev_b32 v%d, 4, v0' % vT1)
    for i in range(16):
        a('ds_read_b128 %s, v%d offset:%d' % (vr(WREG + 4 * i), vT1, WOBUF + i * 1152))
    a('s_mov_b32 s%d, 0x05040100' % sT0)
    a('s_mov_b32 s%d, 0x07060302' % sT1)
    a('s_waitcnt lgkmcnt(0)')
    for p in range(8):
        for d in range(4):
            r0, r1 = WREG + 8 * p + d, WREG + 8 * p + 4 + d
            a('v_perm_b32 v%d, v%d, v%d, s%d' % (vT3, r1, r0, sT0))
            a('v_perm_b32 v%d, v%d, v%d, s%d' % (r1, r1, r0, sT1))
            a('v_mov_b32 v%d, v%d' % (r0, vT3))
    a.fence()
    a('s_branch L_SP_ST')
    a.label('L_LAST')
    a('v_and_b32 v%d, 8, v%d' % (vA1, vL))
    a('v_lshrrev_b32 v%d, 4, v%d' % (vA2, vL))
    a('v_lshl_add_u32 v%d, v%d, 1, v%d' % (vA1, vA2, vA1))
    a('v_lshlrev_b32 v%d, 13, v%d' % (vA1, vA1))
    a('v_and_b32 v%d, 7, v%d' % (vA2, vL))
    a('v_lshl_add_u32 v%d, v%d, 13, v%d' % (vT4, vA2, vA1))
    a('v_lshl_add_u32 v%d, v%d, 3, v%d' % (vA1, vA2, vA1))
    a('s_lshl_b32 s%d, s%d, 17' % (sT0, sKVH))
    a('s_add_u32 s%d, s%d, 0x%x' % (sT0, sT0, O_BASE))
    a('s_lshl_b32 s%d, s%d, 6' % (sT1, sWID))
    a('s_add_u32 s%d, s%d, s%d' % (sT1, sT1, sT0))
    a('s_add_u32 s%d, s%d, 8192' % (sOFFS, sT1))
    a('s_lshl_b32 s%d, s%d, 3' % (sT2, sWID))
    a('s_add_u32 s%d, s%d, s%d' % (sT2, sT2, sT0))
    a('s_add_u32 s%d, s%d, 4096' % (sT2, sT2))
    half(None, None, 0, loads=False)
    for sw in ('v_permlane16_swap_b32', 'v_permlane32_swap_b32'):
        a('v_mov_b32 v%d, v%d' % (vT2, vLs))
        a('%s v%d, v%d' % (sw, vLs, vT2))
        a('v_add_f32 v%d, v%d, v%d' % (vLs, vLs, vT2))
    a('v_min_u32 v%d, -2, v%d' % (vM, vM))
    a('v_min_u32 v%d, -2, v%d' % (vLs, vLs))
    a('s_mov_b32 exec_lo, 0x03030303')
    a('s_mov_b32 exec_hi, 0x03030303')
    a('buffer_store_dwordx2 v[%d:%d], v%d, %s, s%d offen sc1' % (vM, vLs, vT4, srd(sWS), sT2))
    a('s_mov_b64 exec, -1')
    for r in range(4):
        a('v_min_u32 v%d, -2, v%d' % (ACC + r, ACC + r))
    a('buffer_store_dwordx2 v[%d:%d], v%d, %s, s%d offen sc1' % (ACC, ACC + 1, vA1, srd(sWS), sT1))
    a('buffer_store_dwordx2 v[%d:%d], v%d, %s, s%d offen sc1' % (ACC + 2, ACC + 3, vA1, srd(sWS), sOFFS))
    stamp(3)
    a('s_cmp_ge_u32 s%d, 2' % sW)
    a('s_cbranch_scc1 L_HOP2')
    O4 = RING
    ML = RING + 16
    a('v_lshrrev_b32 v%d, 2, v%d' % (vT2, vL))
    a('v_lshlrev_b32 v%d, 3, v%d' % (vT2, vT2))
    a('s_lshl_b32 s%d, s2, 13' % sINB)
    a('s_add_u32 s%d, s%d, 0x%x' % (sINB, sINB, O_BASE))
    a('s_add_u32 s%d, s%d, 4096' % (sT0, sINB))
    a('s_mov_b32 s%d, %d' % (sSPIN, spin))
    a.fence()
    a.label('L_H1POLL')
    for k in range(4):
        a('buffer_load_dwordx4 %s, v%d, %s, s%d offen offset:%d sc1' % (vr(O4 + 4 * k), vOFF, srd(sWS), sINB, k * 1024))
    for k in range(4):
        a('buffer_load_dwordx2 v[%d:%d], v%d, %s, s%d offen offset:%d sc1' % (ML + 2 * k, ML + 2 * k + 1, vT2, srd(sWS), sT0, k * 128))
    a('s_waitcnt vmcnt(0)')
    a('v_max3_u32 v%d, v%d, v%d, v%d' % (vT3, O4, O4 + 1, O4 + 2))
    a('v_max3_u32 v%d, v%d, v%d, v%d' % (vT4, O4 + 3, O4 + 4, O4 + 5))
    for i in range(6, 24, 4):
        a('v_max3_u32 v%d, v%d, v%d, v%d' % (vT3, vT3, O4 + i, O4 + i + 1))
        if i + 2 < 24:
            a('v_max3_u32 v%d, v%d, v%d, v%d' % (vT4, vT4, O4 + i + 2, O4 + i + 3))
    a('v_max_u32 v%d, v%d, v%d' % (vT3, vT3, vT4))
    a('v_cmp_eq_u32 vcc, -1, v%d' % vT3)
    a('s_sub_u32 s%d, s%d, 1' % (sSPIN, sSPIN))
    a('s_cbranch_scc1 L_H1GO')
    a('s_cbranch_vccnz L_H1POLL')
    a.label('L_H1GO')
    stamp(4)
    a('v_max3_f32 v%d, v%d, v%d, v%d' % (vT3, ML, ML + 2, ML + 4))
    a('v_max_f32 v%d, v%d, v%d' % (vT3, vT3, ML + 6))
    allreduce(vT3, 'v_max_f32', vT4, steps=(4, 8))
    for k in range(4):
        a('v_sub_f32 v%d, v%d, v%d' % (ML + 2 * k, ML + 2 * k, vT3))
    for k in range(4):
        a('v_mul_f32 v%d, s%d, v%d' % (ML + 2 * k, sLOG2E, ML + 2 * k))
    for k in range(4):
        a('v_exp_f32 v%d, v%d' % (ML + 2 * k, ML + 2 * k))
    LS = RING + 24
    a('v_mul_f32 v%d, v%d, v%d' % (LS, ML, ML + 1))
    for i in range(4):
        a('v_mul_f32 v%d, v%d, v%d' % (O4 + i, O4 + i, ML))
    for k in range(1, 4):
        a('v_fmac_f32 v%d, v%d, v%d' % (LS, ML + 2 * k, ML + 2 * k + 1))
        for i in range(4):
            a('v_fmac_f32 v%d, v%d, v%d' % (O4 + i, O4 + 4 * k + i, ML + 2 * k))
    regs5 = [O4, O4 + 1, O4 + 2, O4 + 3, LS]
    tmps5 = [B0, B0 + 1, B0 + 2, B0 + 3, B1]
    for st in (4, 8):
        for rg in regs5:
            a('v_add_f32_dpp v%d, v%d, v%d row_ror:%d %s' % (rg, rg, rg, st, DPPM))
    for sw in ('v_permlane16_swap_b32', 'v_permlane32_swap_b32'):
        for rg, t in zip(regs5, tmps5):
            a('v_mov_b32 v%d, v%d' % (t, rg))
        for rg, t in zip(regs5, tmps5):
            a('%s v%d, v%d' % (sw, rg, t))
        for rg, t in zip(regs5, tmps5):
            a('v_add_f32 v%d, v%d, v%d' % (rg, rg, t))
    a('v_rcp_f32 v%d, v%d' % (vT3, LS))
    for k in range(4):
        a('v_mul_f32 v%d, v%d, v%d' % (B0 + k, O4 + k, vT3))
        a('v_fma_f32 v%d, -v%d, v%d, v%d' % (O4 + k, B0 + k, LS, O4 + k))
        a('v_fmac_f32 v%d, v%d, v%d' % (B0 + k, O4 + k, vT3))
    a('v_cvt_pk_bf16_f32 v%d, v%d, v%d' % (B1, B0, B0 + 2))
    a('v_cvt_pk_bf16_f32 v%d, v%d, v%d' % (B1 + 1, B0 + 1, B0 + 3))
    for c in range(4):
        for hlf in range(2):
            a('v_readlane_b32 s%d, v%d, %d' % (sP + c + 4 * hlf, B1 + hlf, c))
    YA = RING + 40
    for p in range(8):
        for col in range(8):
            src = WREG + 8 * p + (4 if col & 1 else 0) + (col >> 1)
            a('v_dot2_f32_bf16 v%d, v%d, s%d, %s' % (YA + col, src, sP + p, ('v%d' % (YA + col)) if p else '0'))
    a('v_lshlrev_b32 v%d, 13, v0' % vT1)
    a('s_lshl_b32 s%d, s2, 4' % sT0)
    a('s_add_u32 s%d, s%d, 0x%x' % (sT0, sT0, Y_BASE))
    a('s_add_u32 s%d, s%d, 4096' % (sT1, sT0))
    for col in range(8):
        a('v_min_u32 v%d, -2, v%d' % (YA + col, YA + col))
    a('v_cmp_gt_u32 vcc, 72, v0')
    a('s_and_saveexec_b64 s[%d:%d], vcc' % (sM0, sM0 + 1))
    a('buffer_store_dwordx4 %s, v%d, %s, s%d offen sc1' % (vr(YA), vT1, srd(sWS), sT0))
    a('buffer_store_dwordx4 %s, v%d, %s, s%d offen sc1' % (vr(YA + 4), vT1, srd(sWS), sT1))
    a('s_mov_b64 exec, -1')
    stamp(8)
    a.fence()
    a.label('L_HOP2')
    a('s_cmp_ge_u32 s2, 144')
    a('s_cbranch_scc1 L_END')
    YV = RING
    ZV = RING + 4
    a('v_lshlrev_b32 v%d, 4, v0' % vT1)
    a('s_lshl_b32 s%d, s2, 12' % sT0)
    a('s_add_u32 s%d, s%d, 0x%x' % (sT0, sT0, Y_BASE))
    a('s_add_u32 s%d, s%d, 0x%x' % (sT1, sT0, Z_BASE - Y_BASE))
    a('s_lshl_b32 s%d, s2, 3' % sT2)
    a('v_lshlrev_b32 v%d, 1, v%d' % (vA1, vL))
    a('buffer_load_ushort v%d, v%d, %s, s%d offen' % (vXO, vA1, srd(sX), sT2))
    a('s_mov_b32 s%d, %d' % (sSPIN, spin))
    a.fence()
    a.label('L_H2POLL')
    a('buffer_load_dwordx4 %s, v%d, %s, s%d offen sc1' % (vr(YV), vT1, srd(sWS), sT0))
    a('buffer_load_dwordx4 %s, v%d, %s, s%d offen sc1' % (vr(ZV), vT1, srd(sWS), sT1))
    a('s_waitcnt vmcnt(0)')
    a('v_max3_u32 v%d, v%d, v%d, v%d' % (vT3, YV, YV + 1, YV + 2))
    a('v_max3_u32 v%d, v%d, v%d, v%d' % (vT4, YV + 3, ZV, ZV + 1))
    a('v_max3_u32 v%d, v%d, v%d, v%d' % (vT3, vT3, ZV + 2, ZV + 3))
    a('v_max_u32 v%d, v%d, v%d' % (vT3, vT3, vT4))
    a('v_cmp_eq_u32 vcc, -1, v%d' % vT3)
    a('s_sub_u32 s%d, s%d, 1' % (sSPIN, sSPIN))
    a('s_cbranch_scc1 L_H2GO')
    a('s_cbranch_vccnz L_H2POLL')
    a.label('L_H2GO')
    stamp(5)
    for k in range(4):
        a('v_permlane32_swap_b32 v%d, v%d' % (YV + k, ZV + k))
    for k in range(4):
        a('v_add_f32 v%d, v%d, v%d' % (YV + k, YV + k, ZV + k))
    a('v_permlane16_swap_b32 v%d, v%d' % (YV, YV + 1))
    a('v_permlane16_swap_b32 v%d, v%d' % (YV + 2, YV + 3))
    a('v_add_f32 v%d, v%d, v%d' % (ZV, YV, YV + 1))
    a('v_add_f32 v%d, v%d, v%d' % (ZV + 1, YV + 2, YV + 3))
    for s in (8, 4, 2, 1):
        for k in range(2):
            a('v_add_f32_dpp v%d, v%d, v%d row_ror:%d %s' % (ZV + k, ZV + k, ZV + k, s, DPPM))
    a('v_lshrrev_b32 v%d, 1, v%d' % (vT1, vL))
    a('s_lshl_b32 s%d, s%d, 5' % (sT0, sW))
    a('v_add_u32 v%d, s%d, v%d' % (vT1, sT0, vT1))
    a('s_mov_b32 exec_lo, 0x00010001')
    a('s_mov_b32 exec_hi, 0x00010001')
    a('ds_write_b64 v%d, v[%d:%d] offset:%d' % (vT1, ZV, ZV + 1, RBUF))
    a('s_mov_b64 exec, -1')
    a('s_waitcnt lgkmcnt(0)')
    a('s_barrier')
    a('s_cmp_lg_u32 s%d, 0' % sW)
    a('s_cbranch_scc1 L_END')
    a('v_and_b32 v%d, 1, v%d' % (vT1, vL))
    a('v_lshlrev_b32 v%d, 3, v%d' % (vT1, vT1))
    a('v_and_b32 v%d, 2, v%d' % (vT2, vL))
    a('v_lshl_add_u32 v%d, v%d, 1, v%d' % (vT1, vT2, vT1))
    for w in range(4):
        a('ds_read_b32 v%d, v%d offset:%d' % (YV + w, vT1, RBUF + w * 32))
        a('ds_read_b32 v%d, v%d offset:%d' % (ZV + w, vT1, RBUF + w * 32 + 16))
    a('s_waitcnt lgkmcnt(0)')
    for base in (YV, ZV):
        a('v_add_f32 v%d, v%d, v%d' % (base, base, base + 1))
        a('v_add_f32 v%d, v%d, v%d' % (base + 2, base + 2, base + 3))
        a('v_add_f32 v%d, v%d, v%d' % (base, base, base + 2))
        rnd_hi(base, base)
    a('v_mul_f32 v%d, s%d, v%d' % (vT1, sLOG2E, ZV))
    a('v_exp_f32 v%d, -v%d' % (vT1, vT1))
    a('v_add_f32 v%d, 1.0, v%d' % (vT1, vT1))
    a('v_rcp_f32 v%d, v%d' % (vT1, vT1))
    a('v_mul_f32 v%d, v%d, v%d' % (vT1, vT1, ZV))
    rnd_hi(vT1, vT1)
    a('v_mul_f32 v%d, v%d, v%d' % (vT1, vT1, YV))
    rnd_hi(vT1, vT1)
    a('v_lshlrev_b32 v%d, 16, v%d' % (vXO, vXO))
    a('v_add_f32 v%d, v%d, v%d' % (vT1, vT1, vXO))
    a('v_cvt_pk_bf16_f32 v%d, v%d, v%d' % (vT1, vT1, vT1))
    a('s_mov_b64 exec, 15')
    a('buffer_store_short v%d, v%d, %s, s%d offen' % (vT1, vA1, srd(sOUT), sT2))
    a('s_mov_b64 exec, -1')
    stamp(6)
    a.label('L_END')
    a('s_endpgm')
    a.raw('.section .rodata,"a"')
    for nm, nv, ns in (('%s_kernel' % NAME, NVGPR, 102),):
        a.raw('.p2align 6')
        a.raw('.amdhsa_kernel %s' % nm)
        a.raw('  .amdhsa_next_free_vgpr %d' % nv)
        a.raw('  .amdhsa_next_free_sgpr %d' % ns)
        a.raw('  .amdhsa_accum_offset %d' % ((nv + 3) // 4 * 4))
        a.raw('  .amdhsa_group_segment_fixed_size 0')
        a.raw('  .amdhsa_kernarg_size 96')
        a.raw('  .amdhsa_user_sgpr_count 2')
        a.raw('  .amdhsa_user_sgpr_kernarg_segment_ptr 1')
        a.raw('  .amdhsa_system_sgpr_workgroup_id_x 1')
        a.raw('  .amdhsa_float_denorm_mode_32 3')
        a.raw('.end_amdhsa_kernel')
    return a.text()


if __name__ == '__main__':
    ap = argparse.ArgumentParser()
    ap.add_argument('-o', default='cdna_kernels/%s.s' % NAME)
    ap.add_argument('--NS', type=int, default=24)
    ap.add_argument('--diag', action='store_true')
    ap.add_argument('--nownt', action='store_true')
    ap.add_argument('--R2', action='store_true')
    ap.add_argument('--cmap', type=int, default=13)
    ap.add_argument('--N1', type=int, default=1920)
    ap.add_argument('--pre', type=int, default=2)
    ap.add_argument('--noextra', action='store_true')
    ap.add_argument('--nocomp', action='store_true')
    args = ap.parse_args()
    open(args.o, 'w').write(gen(NS=args.NS, diag=args.diag, wnt=not args.nownt, R2=args.R2, cmap=args.cmap, N1=args.N1, pre=args.pre, extra=not args.noextra, nocomp=args.nocomp))
```
